```python
import torch

def _softmax(x, axis=-1):
    return torch.softmax(x, dim=axis)

def _gelu(x):
    return torch.nn.functional.gelu(x, approximate='tanh')

def _silu(x):
    return torch.nn.functional.silu(x)

def _sigmoid(x):
    return torch.sigmoid(x)

def _layernorm(x, axis=-1, eps=1e-05):
    m = x.mean(dim=axis, keepdim=True)
    v = x.var(dim=axis, keepdim=True, unbiased=False)
    return (x - m) / torch.sqrt(v + eps)

def _scatter_add(tgt, idx, src, axis=0):
    return tgt.clone().index_add_(axis, idx, src)

def _segment_sum(src, seg, n):
    out = torch.zeros((n,) + src.shape[1:], dtype=src.dtype)
    return out.index_add_(0, seg, src)

def _pad(x, pw):
    flat = tuple((v for pair in reversed(pw) for v in pair))
    return torch.nn.functional.pad(x, flat)
kernel_name = 'recurrent_scan__linear_attn_block__mixer_gmlp__prompt'

def setup_inputs():

    _w = lambda a: (lambda t: t.to(torch.bfloat16) if t.is_floating_point() else t)(torch.as_tensor(a))

    def _A_setup():
        B, S, D = (1, 2048, 512)
        return {'x': _w((lambda *s: torch.randn(*s, dtype=torch.bfloat16) * 0.05)(B, S, D)), 'wqkv': _w((lambda *s: torch.randn(*s, dtype=torch.bfloat16) * 0.05)(D, 3 * D)), 'wo': _w((lambda *s: torch.randn(*s, dtype=torch.bfloat16) * 0.05)(D, D))}
    _A_in = _A_setup()

    def _B_setup():
        B, S, D, F = (1, 2048, 512, 1792)
        Fh = F // 2
        return {'x': _w((lambda *s: torch.randn(*s, dtype=torch.bfloat16) * 0.05)(B, S, D)), 'w_in': _w((lambda *s: torch.randn(*s, dtype=torch.bfloat16) * 0.8)(D, 2 * Fh)), 'w_sp': _w(0.01 * (lambda *s: torch.randn(*s, dtype=torch.bfloat16) * 0.8)(S, S)), 'b_sp': _w(1.0 + 0.01 * (lambda *s: torch.randn(*s, dtype=torch.bfloat16) * 0.05)(S)), 'w_out': _w((lambda *s: torch.randn(*s, dtype=torch.bfloat16) * 0.05)(Fh, D))}
    _B_in = _B_setup()
    return {'A_x': _A_in['x'], 'A_wqkv': _A_in['wqkv'], 'A_wo': _A_in['wo'], 'B_x': _B_in['x'], 'B_w_in': _B_in['w_in'], 'B_w_sp': _B_in['w_sp'], 'B_b_sp': _B_in['b_sp'], 'B_w_out': _B_in['w_out']}

def reference(A_x, A_wqkv, A_wo, B_x, B_w_in, B_w_sp, B_b_sp, B_w_out):

    def _A_ref(x, wqkv, wo):
        B, S, D = x.shape
        H = 32
        Dh = D // H
        qkv = (lambda x, *d: x.permute(*d))((x @ wqkv).reshape(B, S, 3, H, Dh), 2, 0, 3, 1, 4)
        q, k, v = (qkv[0], qkv[1], qkv[2])
        phi = lambda t: torch.where(t > 0, t + 1, torch.exp(t)) + 1e-06
        pq, pk = (phi(q), phi(k))
        kv = torch.einsum('bhsd,bhse->bhde', pk, v)
        z = torch.einsum('bhsd->bhd', pk)
        num = torch.einsum('bhqd,bhde->bhqe', pq, kv)
        den = torch.einsum('bhqd,bhd->bhq', pq, z)[..., None] + 1e-06
        o = num / den
        return (lambda x, *d: x.permute(*d))(o, 0, 2, 1, 3).reshape(B, S, D) @ wo

    def _B_ref(x, w_in, w_sp, b_sp, w_out):
        B, S, D = x.shape
        F = w_in.shape[-1]
        Fh = F // 2
        z = _gelu(torch.einsum('bsd,df->bsf', x, w_in))
        z1 = z[..., :Fh].clone()
        z2 = _layernorm(z[..., Fh:], axis=-1)
        g = torch.einsum('ts,bsf->btf', w_sp, z2) + b_sp[None, :, None]
        return torch.einsum('bsf,fd->bsd', z1 * g, w_out)
    x = A_x
    xn = _layernorm(x, axis=-1)
    s = _A_ref(xn, A_wqkv, A_wo)
    g = _silu(_B_ref(xn, B_w_in, B_w_sp, B_b_sp, B_w_out))
    return x + s * g
```

```python
import re

REG_RE = re.compile(r'^(-|\|)?([vas])(?:(\d+)|\[(\d+):(\d+)\])\|?$')

def regs_of(tok):
    tok = tok.strip()
    t = tok
    if t.startswith('neg(') or t.startswith('abs('): t = t[4:-1]
    t = t.lstrip('-').strip('|')
    if t == 'vcc': return [('s', 106), ('s', 107)]
    if t == 'vcc_lo': return [('s', 106)]
    if t == 'vcc_hi': return [('s', 107)]
    if t == 'exec': return [('s', 126), ('s', 127)]
    if t == 'exec_lo': return [('s', 126)]
    if t == 'exec_hi': return [('s', 127)]
    if t == 'm0': return [('s', 124)]
    m = re.match(r'^([vas])(\d+)$', t)
    if m: return [(m.group(1), int(m.group(2)))]
    m = re.match(r'^([vas])\[(\d+):(\d+)\]$', t)
    if m: return [(m.group(1), k) for k in range(int(m.group(2)), int(m.group(3)) + 1)]
    return []

def split_ops(s):
    out, depth, cur = [], 0, ''
    for ch in s:
        if ch == '[' or ch == '(': depth += 1
        if ch == ']' or ch == ')': depth -= 1
        if ch == ',' and depth == 0:
            out.append(cur.strip()); cur = ''
        else: cur += ch
    if cur.strip(): out.append(cur.strip())
    return out

TRANS = ('v_exp_f32', 'v_log_f32', 'v_rcp_f32', 'v_rsq_f32', 'v_sqrt_f32', 'v_sin_f32', 'v_cos_f32')

class Ins:
    __slots__ = ('text', 'op', 'kind', 'dst', 'src', 'tok', 'comment', 'passes', 'dpp', 'wide_store', 'srcC', 'srcAB', 'lds_dma')
    def __init__(self, text, tok=None, kind=None):
        self.text = text.strip(); self.tok = tok; self.dst = []; self.src = []
        self.passes = 0; self.dpp = False; self.wide_store = False; self.srcC = []; self.srcAB = []; self.lds_dma = False
        if kind is not None:
            self.kind = kind; self.op = kind; return
        t = self.text.split(';')[0].strip()
        if t.endswith(':'):
            self.kind = 'label'; self.op = 'label'; return
        parts = t.split(None, 1)
        op = parts[0]; self.op = op
        rest = parts[1] if len(parts) > 1 else ''
        ops = split_ops(rest)
        mods = ''
        if ops:
            last = ops[-1].split()
            ops[-1] = last[0]; mods = ' '.join(last[1:])
        base = op
        for suf in ('_e32', '_e64', '_dpp', '_sdwa'):
            if base.endswith(suf): base = base[:-len(suf)]
        R = [regs_of(o) for o in ops]
        flat = lambda xs: [r for x in xs for r in x]
        if op.startswith('v_mfma'):
            self.kind = 'mfma'; self.dst = R[0]; self.srcAB = R[1] + R[2]; self.srcC = R[3]; self.src = R[1] + R[2] + R[3]
            self.passes = 8 if '32x32' in op else 4
        elif op.startswith('v_'):
            self.kind = 'trans' if base in TRANS else 'valu'
            self.dpp = ('_dpp' in op) or any(x in mods for x in ('quad_perm', 'row_shr', 'row_shl', 'row_ror', 'row_mirror', 'row_half_mirror', 'row_bcast', 'wave_'))
            if base.startswith('v_cmp'):
                self.dst = R[0]; self.src = flat(R[1:])
                if base.startswith('v_cmpx'): self.dst = self.dst + [('s', 126), ('s', 127)]
            elif base in ('v_readfirstlane_b32', 'v_readlane_b32'):
                self.dst = R[0]; self.src = flat(R[1:]); self.kind = 'readlane'
            elif base.startswith('v_permlane'):
                self.dst = R[0] + R[1]; self.src = R[0] + R[1]; self.kind = 'permlane'
            elif base in ('v_add_co_u32', 'v_sub_co_u32', 'v_addc_co_u32', 'v_subb_co_u32'):
                self.dst = R[0] + R[1]; self.src = flat(R[2:])
            elif base in ('v_fmac_f32', 'v_dot2c_f32_bf16', 'v_mac_f32', 'v_pk_fmac_f16'):
                self.dst = R[0]; self.src = flat(R)
            elif base == 'v_cndmask_b32':
                self.dst = R[0]; self.src = flat(R[1:])
                if len(ops) == 3: self.src += [('s', 106), ('s', 107)]
            elif base == 'v_nop':
                pass
            else:
                self.dst = R[0]; self.src = flat(R[1:])
        elif op.startswith('ds_'):
            self.kind = 'ds'
            if op.startswith('ds_read') or op.startswith('ds_bpermute') or op.startswith('ds_swizzle') or op.startswith('ds_permute'):
                self.dst = R[0]; self.src = flat(R[1:])
            else:
                self.src = flat(R)
        elif op.startswith('buffer_') or op.startswith('global_'):
            self.kind = 'vmem'
            is_lds = (' lds' in (' ' + mods)) or '_lds_' in op
            if op.startswith('buffer_inv') or op.startswith('buffer_wbl2'):
                pass
            elif is_lds:
                self.src = flat(R) + [('s', 124)]; self.lds_dma = True
            elif 'load' in op:
                self.dst = R[0]; self.src = flat(R[1:])
            elif 'atomic' in op and 'sc0' in mods.split():
                self.dst = R[0]; self.src = flat(R)
            else:
                self.src = flat(R)
                if 'x4' in op or 'x3' in op: self.wide_store = True
        elif op.startswith('s_'):
            if op in ('s_waitcnt',): self.kind = 'wait'
            elif op == 's_nop': self.kind = 'nop'
            elif op in ('s_barrier',): self.kind = 'barrier'
            elif op.startswith('s_cbranch') or op == 's_branch' or op == 's_endpgm': self.kind = 'branch'
            elif op.startswith('s_cmp') or op in ('s_sleep', 's_setprio', 's_bitcmp0_b32', 's_bitcmp1_b32'): self.kind = 'salu'; self.src = flat(R)
            elif op.startswith('s_load') or op.startswith('s_memtime') or op.startswith('s_memrealtime') or op.startswith('s_buffer_load'):
                self.kind = 'smem'; self.dst = R[0]; self.src = flat(R[1:])
            else:
                self.kind = 'salu'; self.dst = R[0] if R else []; self.src = flat(R[1:])
        else:
            self.kind = 'other'

class Tok:
    __slots__ = ('name',)
    def __init__(self, name=''): self.name = name

class Prog:
    def __init__(self): self.L = []
    def e(self, text, tok=None):
        for line in text.split('\n'):
            line = line.strip()
            if not line: continue
            self.L.append(Ins(line, tok))
        return tok
    def vm(self, text, tok=None):
        tok = tok or Tok(text[:30]); self.L.append(Ins(text, tok)); return tok
    def ds(self, text, tok=None):
        tok = tok or Tok(text[:30]); self.L.append(Ins(text, tok)); return tok
    def wait_vm(self, tok): self.L.append(Ins('', tok, kind='waitvm'))
    def wait_lgkm(self, tok): self.L.append(Ins('', tok, kind='waitlgkm'))
    def drain_vm(self): self.L.append(Ins('', None, kind='drainvm'))
    def drain_lgkm(self): self.L.append(Ins('', None, kind='drainlgkm'))
    def raw(self, text): self.L.append(Ins(text, None, kind='raw'))
    def comment(self, text): self.L.append(Ins('; ' + text, None, kind='raw'))
    def extend(self, other): self.L.extend(other.L if isinstance(other, Prog) else other)
    def __len__(self): return len(self.L)

def interleave(main, side, start=0, end=None, after_kinds=('mfma',), per=None):
    M = main.L if isinstance(main, Prog) else main
    S = side.L if isinstance(side, Prog) else side
    end = len(M) if end is None else end
    anchors = [k for k in range(start, end) if M[k].kind in after_kinds]
    out = []
    n = len(anchors); si = 0; cnt = 0
    if n == 0:
        return list(M) + list(S)
    for k, ins in enumerate(M):
        out.append(ins)
        if start <= k < end and ins.kind in after_kinds:
            cnt += 1
            target = (len(S) * cnt + n - 1) // n if per is None else min(len(S), per * cnt)
            while si < target or (si < len(S) and S[si].kind in ('waitvm', 'waitlgkm') and si < target + 1 and False):
                out.append(S[si]); si += 1
    out.extend(S[si:])
    return out

def resolve_waits(L):
    out = []
    vmq = []
    lgq = []
    for ins in L:
        if ins.kind == 'vmem':
            if not (ins.op.startswith('buffer_inv')):
                vmq.append(ins.tok)
            out.append(ins)
        elif ins.kind == 'ds':
            lgq.append(ins.tok); out.append(ins)
        elif ins.kind == 'smem':
            lgq.append('SMEM'); lgq.append('SMEM'); out.append(ins)
        elif ins.kind == 'waitvm':
            toks = ins.tok if isinstance(ins.tok, (list, tuple)) else [ins.tok]
            idx = -1
            for t in toks:
                for k in range(len(vmq) - 1, -1, -1):
                    if vmq[k] is t: idx = max(idx, k); break
            if idx < 0: continue
            n = len(vmq) - 1 - idx
            n = min(n, 63)
            out.append(Ins(f's_waitcnt vmcnt({n})'))
            vmq = vmq[len(vmq) - n:] if n > 0 else []
        elif ins.kind == 'waitlgkm':
            toks = ins.tok if isinstance(ins.tok, (list, tuple)) else [ins.tok]
            idx = -1
            for t in toks:
                for k in range(len(lgq) - 1, -1, -1):
                    if lgq[k] is t: idx = max(idx, k); break
            if idx < 0: continue
            n = len(lgq) - 1 - idx
            if 'SMEM' in lgq: n = 0
            n = min(n, 15)
            out.append(Ins(f's_waitcnt lgkmcnt({n})'))
            lgq = lgq[len(lgq) - n:] if n > 0 else []
        elif ins.kind == 'drainvm':
            out.append(Ins('s_waitcnt vmcnt(0)')); vmq = []
        elif ins.kind == 'drainlgkm':
            out.append(Ins('s_waitcnt lgkmcnt(0)')); lgq = []
        elif ins.kind == 'wait':
            m = re.search(r'vmcnt\((\d+)\)', ins.text)
            if m:
                n = int(m.group(1)); vmq = vmq[len(vmq) - n:] if 0 < n < len(vmq) else ([] if n == 0 else vmq)
            m = re.search(r'lgkmcnt\((\d+)\)', ins.text)
            if m:
                n = int(m.group(1)); lgq = lgq[len(lgq) - n:] if 0 < n < len(lgq) else ([] if n == 0 else lgq)
            out.append(ins)
        else:
            out.append(ins)
    return out

def _states(ins):
    if ins.kind == 'nop':
        return int(ins.text.split()[1], 0) + 1
    if ins.kind in ('label', 'raw'): return 0
    return 1

def pad_hazards(L, verbose=False):
    out = []
    hist = []
    npad = 0
    VALU = ('valu', 'trans', 'readlane', 'permlane')
    for ins in L:
        if ins.kind in ('label', 'raw'):
            out.append(ins); continue
        need = 0
        sv = set(ins.src); dv = set(ins.dst)
        for p, d in hist:
            req = 0
            pd = set(p.dst)
            if p.kind in VALU:
                vw = {r for r in pd if r[0] in 'va'}
                sw = {r for r in pd if r[0] == 's'}
                if ins.kind == 'mfma' and vw & sv: req = max(req, 2)
                if ins.dpp and vw & sv: req = max(req, 2)
                if ins.kind == 'permlane' and vw & sv: req = max(req, 2)
                if ins.kind == 'readlane' and vw & sv: req = max(req, 1)
                if p.kind == 'trans' and ins.kind in ('valu', 'permlane', 'readlane', 'mfma') and vw & sv: req = max(req, 1)
                if p.kind == 'trans' and ins.kind in ('ds', 'vmem') and vw & sv: req = max(req, 1)
                if p.op.startswith('v_dot'):
                    if ins.op == p.op:
                        ops_ab = set(ins.src[:-len(ins.dst)]) if ins.dst else set(ins.src)
                        if vw & ops_ab: req = max(req, 3)
                    elif vw & (sv | dv): req = max(req, 3)
                if sw & sv:
                    if ins.kind in ('valu', 'trans', 'permlane'): req = max(req, 2)
                    if ins.kind == 'readlane': req = max(req, 4)
                    if ins.kind == 'vmem': req = max(req, 5)
                    if ins.kind in ('salu', 'branch', 'smem'): req = max(req, 3)
                if sw and ins.kind == 'branch' and ('vcc' in ins.text) and (('s', 106) in sw): req = max(req, 5)
                if (('s', 126) in sw) and ins.dpp: req = max(req, 5)
            elif p.kind == 'mfma':
                D = pd
                n8 = p.passes == 8
                if ins.kind == 'mfma':
                    if D & set(ins.srcAB): req = max(req, 12 if n8 else 8)
                    c = set(ins.srcC)
                    if D & c:
                        if not (c == D and ins.passes == p.passes): req = max(req, 10 if n8 else 6)
                    if (D & dv) and not (c == D): req = max(req, 10 if n8 else 6)
                elif ins.kind in VALU:
                    if D & (sv | dv): req = max(req, 12 if n8 else 8)
                    if set(p.srcC) & dv: req = max(req, 7 if n8 else 3)
                elif ins.kind in ('ds', 'vmem'):
                    if D & (sv | dv): req = max(req, 12 if n8 else 8)
            elif p.kind == 'salu':
                if ('s', 124) in pd and ins.lds_dma: req = max(req, 1)
                if (('s', 126) in pd or ('s', 127) in pd) and ins.dpp: req = max(req, 1)
            elif p.kind == 'vmem' and p.wide_store:
                data = {r for r in p.src if r[0] in 'va'}
                if ins.kind in VALU and data & dv: req = max(req, 2)
            if req > d: need = max(need, req - d)
        if need > 0:
            npad += 1
            k = need
            while k > 0:
                n = min(k, 16)
                nop = Ins(f's_nop {n-1}')
                out.append(nop); k -= n
            for h in hist: h[1] += need
        out.append(ins)
        st = _states(ins)
        for h in hist: h[1] += st
        hist = [h for h in hist if h[1] < 24]
        if ins.kind in VALU or ins.kind in ('mfma', 'salu') or (ins.kind == 'vmem' and ins.wide_store):
            hist.append([ins, 0])
    if verbose: print('hazard pads inserted:', npad)
    return out

def finalize(prog, verbose=False):
    L = resolve_waits(prog.L if isinstance(prog, Prog) else prog)
    L = pad_hazards(L, verbose)
    lines = []
    for ins in L:
        if ins.kind == 'label': lines.append(ins.text)
        else: lines.append('    ' + ins.text)
    return '\n'.join(lines)
```

```python
import sys, math, struct
sys.path.insert(0, 'dev')
from asmfw import *

NAME = "recurrent_scan__linear_attn_block__mixer_gmlp__prompt"
def f2u(x): return struct.unpack('<I', struct.pack('<f', x))[0]

WS_EPOCH = 0
WS_ZF    = 0x1000
WS_F2    = 0x2000
WS_F3    = 0xA000
WS_F4    = 0x12000
WS_KV    = 0x20000
WS_ZA    = 0x28000
WS_S1    = 0x40000
WS_Z2N   = 0x100000
Z2N_J    = 524288
WS_ACT   = 0x500000
ACT_T    = 88 * 512
ACT_I    = 4 * 88 * 512
WS_SIZE  = 0xB00000
WS_DUMP  = 0x2000000
LDS_XN   = 0
XN_RS    = 1040
SLOT     = [67584, 100352, 0, 32768]
LDS_M1   = 65536
LDS_M2   = 133120
LDS_ZT   = LDS_M2
LDS_AB   = LDS_M2 + 18432
LDS_TOTAL = 163840

SRD_X, SRD_QKV, SRD_WIN, SRD_WSP, SRD_WO, SRD_WOUT, SRD_OUT, SRD_WS, SRD_BSP = 8, 12, 16, 20, 24, 28, 32, 36, 40
S_I, S_J, S_W, S_TAG = 44, 45, 46, 47
S_T0 = 48
S_GC1, S_L2E, S_EPS6 = 56, 57, 58
S_MASK16 = 60
S_RH, S_CH = 62, 63
S_DBG = 82
def srd(n): return f's[{n}:{n+3}]'

V_LANE = 1
V_ZDMA = 2
V_KDMA = 9
V_ZRD  = 13
V_KRD  = 14
V_RD   = 15
V_SDMA = 2
V_W3DMA = 9
V_GC0  = 17
V_WF   = 20
V_ACC0 = 64
V_ACC1 = 96
V_ACC2 = 128
V_T    = 160
V_ACCQ = 176
V_PQ   = 52
V_Z1P  = 192
V_BSP  = 60
V_TMP  = 208
def vr(n, k=1): return f'v{n}' if k == 1 else f'v[{n}:{n+k-1}]'
def ar(n, k=1): return f'a{n}' if k == 1 else f'a[{n}:{n+k-1}]'

class Cfg:
    stop = None
    dump = []
    stamps = False

def dump_regs(p, regs, cfg, slot0=0):
    p.comment('debug dump')
    p.e(f's_lshl_b32 s48, s2, 2\ns_add_u32 s48, s48, s{S_W}\ns_lshl_b32 s48, s48, 15\ns_add_u32 s48, s48, {WS_DUMP}')
    p.e(f'v_lshlrev_b32 v250, 2, v{V_LANE}')
    p.e('s_nop 15\ns_nop 15')
    for k, r in enumerate(regs):
        k += slot0
        if r.startswith('a'):
            p.e(f'v_accvgpr_read_b32 v251, {r}')
            r = 'v251'
        p.e(f's_add_u32 s49, s48, {k*256}')
        p.vm(f'buffer_store_dword {r}, v250, {srd(SRD_WS)}, s49 offen')
        p.drain_vm()

def prologue(p, cfg):
    p.e('s_cmp_ge_u32 s2, 256\ns_cbranch_scc1 L_end')
    p.e('s_load_dwordx16 s[64:79], s[0:1], 0\ns_load_dwordx4 s[80:83], s[0:1], 64\ns_load_dwordx2 s[84:85], s[0:1], 80')
    p.e(f'v_and_b32 v{V_LANE}, 63, v0\nv_lshrrev_b32 v2, 6, v0')
    p.e(f'v_readfirstlane_b32 s{S_W}, v2')
    p.e(f's_and_b32 s48, s2, 7\ns_lshr_b32 s49, s2, 3')
    p.e(f's_lshr_b32 s{S_I}, s48, 1\ns_lshl_b32 s{S_I}, s{S_I}, 3\ns_and_b32 s50, s49, 7\ns_add_u32 s{S_I}, s{S_I}, s50')
    p.e(f's_and_b32 s{S_J}, s48, 1\ns_lshl_b32 s{S_J}, s{S_J}, 2\ns_lshr_b32 s50, s49, 3\ns_add_u32 s{S_J}, s{S_J}, s50')
    p.e(f's_and_b32 s{S_RH}, s{S_W}, 1\ns_lshr_b32 s{S_CH}, s{S_W}, 1')
    p.e(f's_mov_b32 s{S_GC1}, {f2u(-0.1029432395800235):#x}\ns_mov_b32 s{S_L2E}, {f2u(math.log2(math.e)):#x}\ns_mov_b32 s{S_EPS6}, {f2u(1e-6):#x}')
    p.e(f's_mov_b32 s{S_MASK16}, 0xffff0000\ns_mov_b32 s{S_MASK16+1}, 0xffff0000')
    p.e(f'v_mov_b32 v{V_GC0}, {f2u(-2.302208198144325):#x}')
    p.drain_lgkm()
    wsz = WS_SIZE if not cfg.stop else 0x4000000
    for s, ptr, size in ((SRD_X, 64, 2048*1024), (SRD_QKV, 66, 512*3072), (SRD_WO, 68, 512*1024), (SRD_WIN, 72, 512*3584),
                         (SRD_WSP, 74, 2048*4096), (SRD_BSP, 76, 4096), (SRD_WOUT, 78, 896*1024), (SRD_OUT, 80, 2048*1024), (SRD_WS, 84, wsz)):
        p.e(f's_mov_b32 s{s}, s{ptr}\ns_and_b32 s{s+1}, s{ptr+1}, 0xffff\ns_mov_b32 s{s+2}, {size:#x}\ns_mov_b32 s{s+3}, 0x20000')

def addr_setup(p):
    L = V_LANE
    t0, t1, t2, t3 = V_T, V_T+1, V_T+2, V_T+3
    for u in range(7):
        p.e(f'v_add_u32 v{t0}, {64*u}, v{L}')
        p.e(f'v_mul_u32_u24 v{t1}, 4682, v{t0}\nv_lshrrev_b32 v{t1}, 16, v{t1}')
        p.e(f'v_mul_u32_u24 v{t2}, 14, v{t1}\nv_sub_u32 v{t2}, v{t0}, v{t2}')
        p.e(f'v_and_b32 v{t3}, 0xf8, v{t1}')
        p.e(f'v_and_b32 v{t0}, 1, v{t1}\nv_lshl_or_b32 v{t3}, v{t0}, 2, v{t3}')
        p.e(f'v_bfe_u32 v{t0}, v{t1}, 1, 2\nv_or_b32 v{t3}, v{t3}, v{t0}')
        p.e(f'v_mul_u32_u24 v{t3}, 3584, v{t3}\nv_lshl_add_u32 v{V_ZDMA+u}, v{t2}, 4, v{t3}')
        if u & 3: p.e(f'v_subrev_u32 v{V_ZDMA+u}, {(u&3)*1024}, v{V_ZDMA+u}')
    p.e(f'v_lshrrev_b32 v{t0}, 3, v{L}\nv_and_b32 v{t1}, 7, v{L}')
    p.e(f'v_bfe_u32 v{t2}, v{L}, 4, 1\nv_lshlrev_b32 v{t2}, 2, v{t2}\nv_xor_b32 v{t1}, v{t1}, v{t2}')
    p.e(f'v_mul_u32_u24 v{t0}, 3072, v{t0}\nv_lshl_add_u32 v{V_KDMA}, v{t1}, 4, v{t0}')
    for u in range(1, 4):
        p.e(f'v_add_u32 v{V_KDMA+u}, {u*8*3072 - u*1024}, v{V_KDMA}')
    p.e(f'v_lshrrev_b32 v{t0}, 5, v{L}\nv_bfe_u32 v{t1}, v{L}, 2, 2')
    p.e(f'v_lshlrev_b32 v{t2}, 3, v{t0}\nv_lshl_add_u32 v{t2}, v{t1}, 1, v{t2}')
    p.e(f'v_mul_u32_u24 v{t2}, 224, v{t2}')
    p.e(f'v_bfe_u32 v{t3}, v{L}, 4, 1\nv_lshl_add_u32 v{t2}, v{t3}, 5, v{t2}')
    p.e(f'v_and_b32 v{V_T+4}, 3, v{L}\nv_lshl_add_u32 v{t2}, v{V_T+4}, 3, v{t2}')
    p.e(f's_lshl_b32 s48, s{S_W}, 6\nv_add_u32 v{V_ZRD}, s48, v{t2}')
    p.e(f'v_lshl_add_u32 v{t2}, v{t0}, 3, v{t1}\nv_lshlrev_b32 v{t2}, 7, v{t2}')
    p.e(f'v_lshrrev_b32 v{t1}, 1, v{t1}\nv_xor_b32 v{t1}, s{S_CH}, v{t1}\nv_lshl_add_u32 v{t2}, v{t1}, 6, v{t2}')
    p.e(f'v_lshl_add_u32 v{t2}, v{t3}, 5, v{t2}\nv_lshl_add_u32 v{V_KRD}, v{V_T+4}, 3, v{t2}')

P1_STAGES = [('Z', 'z2', k) for k in range(4)] + [('KV', 'kv', k) for k in range(4)] + [('Z', 'z1', k) for k in range(4)] + [('Q', 'q', k) for k in range(2)]

ALL_STAGES = P1_STAGES + [('SP', 'sp', k) for k in range(8)] + [('W3', 'wo', k) for k in range(2)] + [('W3', 'wout', k) for k in range(4)]

def dma_stage(p, s, toks):
    if s >= len(ALL_STAGES): return
    slot = SLOT[s % 4]
    typ, blk, k = ALL_STAGES[s]
    tl = toks.setdefault(s, [])
    if typ == 'SP':
        p.e(f's_lshl_b32 s48, s{S_I}, 18\ns_lshl_b32 s49, s{S_W}, 7\ns_add_u32 s48, s48, s49')
        if k: p.e(f's_add_u32 s48, s48, {k*512}')
        p.e(f's_add_u32 s50, s48, {32*4096}')
        p.e(f's_lshl_b32 s49, s{S_W}, 13\ns_add_u32 m0, s49, {slot}')
        for g8 in range(8):
            if g8 == 4: p.e('s_add_u32 m0, m0, 4096')
            tl.append(p.vm(f'buffer_load_dwordx4 v{V_SDMA+(g8&3)}, {srd(SRD_WSP)}, s{48 if g8 < 4 else 50} offen offset:{(g8&3)*1024} lds'))
    elif typ == 'W3':
        sr = SRD_WO if blk == 'wo' else SRD_WOUT
        nrows = 512 if blk == 'wo' else 896
        for half in range(2):
            row0 = 256*k + 128*half
            if row0 >= nrows: continue
            p.e(f's_lshl_b32 s48, s{S_W}, 5\ns_add_u32 s48, s48, {row0}\ns_lshl_b32 s48, s48, 10\ns_lshl_b32 s49, s{S_J}, 7\ns_add_u32 s48, s48, s49')
            p.e(f's_lshl_b32 s49, s{S_W}, 12\ns_add_u32 m0, s49, {slot + 16384*half}')
            for u in range(4):
                tl.append(p.vm(f'buffer_load_dwordx4 v{V_W3DMA+u}, {srd(sr)}, s48 offen offset:{u*1024} lds'))
    elif typ == 'Z':
        col = (1792 if blk == 'z2' else 0)
        p.e(f's_lshl_b32 s48, s{S_W}, 5\ns_add_u32 s48, s48, {128*k}\ns_mul_i32 s48, s48, 3584\ns_mul_i32 s49, s{S_J}, 224\ns_add_u32 s48, s48, s49')
        if col: p.e(f's_add_u32 s48, s48, {col}')
        p.e(f's_mul_i32 s49, s{S_W}, 7168\ns_add_u32 m0, s49, {slot}')
        for u in range(7):
            if u == 4: p.e('s_add_u32 m0, m0, 4096')
            tl.append(p.vm(f'buffer_load_dwordx4 v{V_ZDMA+u}, {srd(SRD_WIN)}, s48 offen offset:{(u&3)*1024} lds'))
    else:
        parts = [(128*k, 1024, 0), (128*k, 2048, 16384)] if typ == 'KV' else [(256*k, 0, 0), (256*k + 128, 0, 16384)]
        for row0, col, lo in parts:
            p.e(f's_lshl_b32 s48, s{S_W}, 5\ns_add_u32 s48, s48, {row0}\ns_mul_i32 s48, s48, 3072\ns_lshl_b32 s49, s{S_J}, 7\ns_add_u32 s48, s48, s49')
            if col: p.e(f's_add_u32 s48, s48, {col}')
            p.e(f's_lshl_b32 s49, s{S_W}, 12\ns_add_u32 m0, s49, {slot+lo}')
            for u in range(4):
                tl.append(p.vm(f'buffer_load_dwordx4 v{V_KDMA+u}, {srd(SRD_QKV)}, s48 offen offset:{u*1024} lds'))

def p0_x(p, cfg, toks):
    XB = V_T
    TMP = 224
    L = V_LANE
    voff = TMP
    p.e(f'v_lshrrev_b32 v{TMP+1}, 3, v{L}\nv_and_b32 v{TMP+2}, 7, v{L}')
    p.e(f'v_lshlrev_b32 v{voff}, 10, v{TMP+1}\nv_lshl_add_u32 v{voff}, v{TMP+2}, 4, v{voff}')
    p.e(f's_lshl_b32 s48, s{S_I}, 16\ns_lshl_b32 s49, s{S_W}, 14\ns_add_u32 s48, s48, s49\ns_add_u32 s49, s48, 8192')
    xt = []
    for hh in range(2):
        for seg in range(8):
            r = XB + (hh*8+seg)*4
            xt.append(p.vm(f'buffer_load_dwordx4 {vr(r,4)}, v{voff}, {srd(SRD_X)}, s{48+hh} offen offset:{seg*128}'))
    vwb = TMP+3
    p.e(f's_lshl_b32 s50, s{S_W}, 4\nv_add_u32 v{vwb}, s50, v{TMP+1}\nv_mul_u32_u24 v{vwb}, {XN_RS}, v{vwb}\nv_lshl_add_u32 v{vwb}, v{TMP+2}, 4, v{vwb}')
    return xt, XB, TMP, vwb

def p0_norm(p, cfg, xt, XB, TMP, vwb):
    ones = TMP+4
    S = [TMP+6, TMP+7, TMP+8, TMP+9]
    Q = [TMP+10, TMP+11, TMP+12, TMP+13]
    p.e(f'v_mov_b32 v{ones}, 0x3f803f80')
    for r in S + Q: p.e(f'v_mov_b32 v{r}, 0')
    for hh in range(2):
        for seg in range(8):
            p.wait_vm(xt[hh*8+seg])
            r = XB + (hh*8+seg)*4
            for d in range(4):
                c = hh*2 + (d & 1)
                p.e(f'v_dot2_f32_bf16 v{S[c]}, v{r+d}, v{ones}, v{S[c]}')
                p.e(f'v_dot2_f32_bf16 v{Q[c]}, v{r+d}, v{r+d}, v{Q[c]}')
    for hh in range(2):
        p.e(f'v_add_f32 v{S[2*hh]}, v{S[2*hh]}, v{S[2*hh+1]}\nv_add_f32 v{Q[2*hh]}, v{Q[2*hh]}, v{Q[2*hh+1]}')
    vals = [S[0], Q[0], S[2], Q[2]]
    for dpp in ('quad_perm:[1,0,3,2]', 'quad_perm:[2,3,0,1]', 'row_half_mirror'):
        for v in vals:
            p.e(f'v_add_f32_dpp v{v}, v{v}, v{v} {dpp} row_mask:0xf bank_mask:0xf')
    AB = [TMP+14, TMP+16]
    assert AB[0] % 2 == 0
    for hh in range(2):
        s_, q_ = S[2*hh], Q[2*hh]
        a = AB[hh]
        p.e(f'v_mul_f32 v{s_}, {f2u(1/512):#x}, v{s_}')
        p.e(f'v_mul_f32 v{q_}, {f2u(1/512):#x}, v{q_}')
        p.e(f'v_fma_f32 v{q_}, -v{s_}, v{s_}, v{q_}')
        p.e(f'v_max_f32 v{q_}, 0, v{q_}')
        p.e(f'v_add_f32 v{q_}, {f2u(1e-5):#x}, v{q_}')
        p.e(f'v_rsq_f32 v{a}, v{q_}')
        p.e(f'v_mul_f32 v{a+1}, v{s_}, v{a}\nv_sub_f32 v{a+1}, 0, v{a+1}')
    T2 = [TMP+18, TMP+20, TMP+22, TMP+24]
    n = 0
    for hh in range(2):
        a = AB[hh]
        for seg in range(8):
            r = XB + (hh*8+seg)*4
            for d in range(4):
                t = T2[n % 4]; n += 1
                p.e(f'v_lshlrev_b32 v{t}, 16, v{r+d}\nv_and_b32 v{t+1}, 0xffff0000, v{r+d}')
                p.e(f'v_pk_fma_f32 {vr(t,2)}, {vr(t,2)}, {vr(a,2)}, {vr(a,2)} op_sel:[0,0,1] op_sel_hi:[1,0,1]')
                p.e(f'v_cvt_pk_bf16_f32 v{r+d}, v{t}, v{t+1}')
            p.ds(f'ds_write_b128 v{vwb}, {vr(r,4)} offset:{hh*8*XN_RS + seg*128}')

def xfrag_reads(p):
    L = V_LANE
    t0, t1, t2 = V_T, V_T+1, V_T+2
    p.e(f'v_and_b32 v{t0}, 0x13, v{L}')
    p.e(f'v_bfe_u32 v{t1}, v{L}, 2, 1\nv_lshl_or_b32 v{t0}, v{t1}, 3, v{t0}')
    p.e(f'v_bfe_u32 v{t1}, v{L}, 3, 1\nv_lshl_or_b32 v{t0}, v{t1}, 2, v{t0}')
    p.e(f'v_mul_u32_u24 v{t0}, {XN_RS}, v{t0}\nv_lshrrev_b32 v{t1}, 5, v{L}\nv_lshl_add_u32 v{t0}, v{t1}, 4, v{t0}')
    p.e(f's_mul_i32 s48, s{S_RH}, {32*XN_RS}\ns_sub_u32 s49, {32*XN_RS}, s48')
    p.e(f'v_add_u32 v{t1}, s48, v{t0}\nv_add_u32 v{t2}, s49, v{t0}')
    toks = {}
    for b in range(32):
        toks[(0, b)] = p.ds(f'ds_read_b128 {ar(4*b,4)}, v{t1} offset:{32*b}')
        toks[(1, b)] = p.ds(f'ds_read_b128 {ar(128+4*b,4)}, v{t2} offset:{32*b}')
    return toks

def gelu16(p, r0, n, tmp):
    for c in range(0, n, 4):
        xs = [r0+c+k for k in range(4)]
        t = [tmp+k for k in range(4)]; u = [tmp+4+k for k in range(4)]
        for k in range(4): p.e(f'v_mul_f32 v{t[k]}, v{xs[k]}, v{xs[k]}')
        for k in range(4): p.e(f'v_fma_f32 v{t[k]}, v{t[k]}, s{S_GC1}, v{V_GC0}')
        for k in range(4): p.e(f'v_mul_f32 v{t[k]}, v{xs[k]}, v{t[k]}')
        for k in range(4): p.e(f'v_exp_f32 v{u[k]}, v{t[k]}')
        for k in range(4): p.e(f'v_add_f32 v{u[k]}, 1.0, v{u[k]}')
        for k in range(4): p.e(f'v_rcp_f32 v{u[k]}, v{u[k]}')
        for k in range(4): p.e(f'v_mul_f32 v{xs[k]}, v{xs[k]}, v{u[k]}')

def phi16(p, r0, n, tmp):
    for c in range(0, n, 4):
        xs = [r0+c+k for k in range(4)]
        t = [tmp+k for k in range(4)]
        for k in range(4): p.e(f'v_mul_f32 v{t[k]}, s{S_L2E}, v{xs[k]}')
        for k in range(4): p.e(f'v_min_f32 v{t[k]}, 0, v{t[k]}')
        for k in range(4): p.e(f'v_exp_f32 v{t[k]}, v{t[k]}')
        for k in range(4): p.e(f'v_max_f32 v{xs[k]}, 0, v{xs[k]}')
        for k in range(4): p.e(f'v_add_f32 v{xs[k]}, v{xs[k]}, v{t[k]}')
        for k in range(4): p.e(f'v_add_f32 v{xs[k]}, s{S_EPS6}, v{xs[k]}')

def pack(p, dst, src, n):
    for k in range(0, n, 2):
        p.e(f'v_cvt_pk_bf16_f32 v{dst + k//2}, v{src+k}, v{src+k+1}')

def p1_steps():
    out = []
    for s, (typ, blk, k) in enumerate(P1_STAGES):
        nb = 16 if typ == 'Q' else 8
        for bl in range(nb):
            out.append((s, bl, k*nb + bl, typ, blk))
    return out

def p1_main(p, cfg, dtoks, xtoks, side, pre_barrier):
    steps = p1_steps()
    ACC = {'z2': V_ACC0, 'kv': V_ACC1, 'z1': V_ACC2, 'q': V_ACCQ}
    rtoks = {}
    def issue_reads(n):
        s, bl, bg, typ, blk = steps[n]
        if bl == 0:
            base = V_ZRD if typ == 'Z' else V_KRD
            p.e(f'v_add_u32 v{V_RD + (s&1)}, {SLOT[s%4]}, v{base}')
        rb = V_RD + (s & 1)
        wf = V_WF + 8*(n % 4)
        tl = []
        if typ == 'Z':
            for t in range(2): tl.append(p.ds(f'ds_read_b64_tr_b16 {vr(wf+2*t,2)}, v{rb} offset:{3584*bl + 224*t}'))
        elif typ == 'KV':
            for part in range(2):
                for t in range(2): tl.append(p.ds(f'ds_read_b64_tr_b16 {vr(wf+4*part+2*t,2)}, v{rb} offset:{2048*bl + 512*t + 16384*part}'))
        else:
            for t in range(2): tl.append(p.ds(f'ds_read_b64_tr_b16 {vr(wf+2*t,2)}, v{rb} offset:{2048*bl + 512*t}'))
        rtoks[n] = tl
    nst = len(P1_STAGES)
    issue_reads(0); issue_reads(1)
    for n, (s, bl, bg, typ, blk) in enumerate(steps):
        nb = 16 if typ == 'Q' else 8
        if bl == nb - 2:
            p.comment(f'--- barrier for stage {s+1}')
            p.wait_vm(dtoks[s+1])
            if s == 0: p.wait_lgkm(list(xtoks.values()))
            if s in pre_barrier: p.extend(pre_barrier[s])
            p.e('s_barrier')
            if s == 0: dma_stage(p, 2, dtoks)
            if s + 3 == nst: sp_addr_setup(p)
            dma_stage(p, s+3, dtoks)
        if n + 2 < len(steps): issue_reads(n+2)
        p.wait_lgkm(rtoks[n] + [xtoks[(0, bg)], xtoks[(1, bg)]])
        wf = V_WF + 8*(n % 4)
        acc = ACC[blk]
        c0 = lambda a: ('0' if bg == 0 else vr(a, 16))
        M = 'v_mfma_f32_32x32x16_bf16'
        if blk == 'z2':
            p.e(f'{M} {vr(acc,16)}, {ar(4*bg,4)}, {vr(wf,4)}, {c0(acc)}')
            p.e(f'{M} {vr(acc+16,16)}, {ar(128+4*bg,4)}, {vr(wf,4)}, {c0(acc+16)}')
        elif blk == 'z1':
            p.e(f'{M} {vr(acc,16)}, {vr(wf,4)}, {ar(4*bg,4)}, {c0(acc)}')
            p.e(f'{M} {vr(acc+16,16)}, {vr(wf,4)}, {ar(128+4*bg,4)}, {c0(acc+16)}')
        elif blk == 'kv':
            p.e(f'{M} {vr(acc,16)}, {ar(4*bg,4)}, {vr(wf,4)}, {c0(acc)}')
            p.e(f'{M} {vr(acc+16,16)}, {ar(4*bg,4)}, {vr(wf+4,4)}, {c0(acc+16)}')
        else:
            p.e(f'{M} {vr(acc,16)}, {vr(wf,4)}, {ar(4*bg,4)}, {c0(acc)}')
        if bl == nb - 1 and s in side:
            p.extend(side[s])


uid = [0]
def label(prefix):
    uid[0] += 1
    return f'L_{prefix}_{uid[0]}'

def poll(p, voff, soff_s, vt, name):
    l0, l1 = label(name), label(name + 'ok')
    p.e(f's_mov_b32 s51, 0')
    p.e(f'{l0}:')
    p.vm(f'buffer_load_dword v{vt}, v{voff}, {srd(SRD_WS)}, s{soff_s} offen sc1')
    p.e('s_waitcnt vmcnt(0)')
    p.e(f'v_cmp_ne_u32 vcc, s{S_TAG}, v{vt}')
    p.e(f's_add_u32 s51, s51, 1')
    p.e(f's_cbranch_vccz {l1}')
    p.e(f's_sleep 4')
    p.e(f's_cmp_lt_u32 s51, 0x40000')
    p.e(f's_cbranch_scc1 {l0}')
    p.e(f'{l1}:')

def flag_store(p, soff_s, vt):
    p.e(f'v_mov_b32 v{vt}, s{S_TAG}\nv_mov_b32 v{vt+1}, 0')
    p.e('s_mov_b64 exec, 1')
    t = p.vm(f'buffer_store_dword v{vt}, v{vt+1}, {srd(SRD_WS)}, s{soff_s} offen sc1')
    p.e('s_mov_b64 exec, -1')
    return t

def epoch_and_zero(p):
    T = V_TMP + 30
    p.e(f'v_mov_b32 v{T}, 0')
    et = p.vm(f'buffer_load_dword v{T+1}, v{T}, {srd(SRD_WS)}, 0 offen sc1')
    for k in range(4): p.e(f'v_mov_b32 v{T+2+k}, 0')
    p.e(f's_lshl_b32 s52, s{S_J}, 12\ns_lshl_b32 s53, s{S_W}, 10\ns_add_u32 s52, s52, s53\ns_add_u32 s52, s52, {WS_KV}')
    p.e(f's_cmp_eq_u32 s{S_I}, 0\ns_cselect_b32 s52, s52, 0x7f000000')
    p.e(f'v_lshlrev_b32 v{T+6}, 4, v{V_LANE}')
    z1 = p.vm(f'buffer_store_dwordx4 {vr(T+2,4)}, v{T+6}, {srd(SRD_WS)}, s52 offen sc1')
    p.e(f's_lshl_b32 s53, s{S_J}, 8\ns_add_u32 s53, s53, {WS_ZA}')
    p.e(f's_or_b32 s54, s{S_I}, s{S_W}\ns_cmp_eq_u32 s54, 0\ns_cselect_b32 s53, s53, 0x7f000000')
    p.e('s_mov_b64 exec, 0xffff')
    z2 = p.vm(f'buffer_store_dwordx4 {vr(T+2,4)}, v{T+6}, {srd(SRD_WS)}, s53 offen sc1')
    p.e('s_mov_b64 exec, -1')
    return et, [z1, z2], T

def epoch_finish(p, et, zt, T):
    p.wait_vm([et] + zt)
    p.e(f'v_readfirstlane_b32 s{S_TAG}, v{T+1}')
    p.e(f's_mul_i32 s{S_TAG}, s{S_TAG}, 1664525\ns_add_u32 s{S_TAG}, s{S_TAG}, 1013904223')
    p.e(f's_lshl_b32 s52, s{S_J}, 9\ns_lshl_b32 s53, s{S_W}, 7\ns_add_u32 s52, s52, s53\ns_add_u32 s52, s52, {WS_ZF}')
    p.e(f's_cmp_eq_u32 s{S_I}, 0\ns_cselect_b32 s52, s52, 0x7f000000')
    flag_store(p, 52, T)

def sp_addr_setup(p):
    L = V_LANE; t0, t1, t2 = V_TMP+36, V_TMP+37, V_TMP+38
    p.e(f'v_lshrrev_b32 v{t0}, 3, v{L}\nv_and_b32 v{t1}, 7, v{L}\nv_lshrrev_b32 v{t2}, 1, v{t0}')
    p.e(f'v_xor_b32 v{t1}, v{t1}, v{t2}')
    p.e(f'v_lshlrev_b32 v{t0}, 12, v{t0}')
    for g in range(4):
        if g & 1:
            p.e(f'v_xor_b32 v{t2}, 4, v{t1}\nv_lshl_add_u32 v{V_SDMA+g}, v{t2}, 4, v{t0}')
        else:
            p.e(f'v_lshl_add_u32 v{V_SDMA+g}, v{t1}, 4, v{t0}')
        if g: p.e(f'v_add_u32 v{V_SDMA+g}, {g*8*4096 - g*1024}, v{V_SDMA+g}')

def w3_addr_setup(p):
    L = V_LANE; t0, t1, t2 = V_TMP+36, V_TMP+37, V_TMP+38
    p.e(f'v_lshrrev_b32 v{t0}, 3, v{L}\nv_and_b32 v{t1}, 7, v{L}\nv_and_b32 v{t2}, 6, v{t0}')
    p.e(f'v_xor_b32 v{t1}, v{t1}, v{t2}')
    p.e(f'v_lshlrev_b32 v{t0}, 10, v{t0}\nv_lshl_add_u32 v{V_W3DMA}, v{t1}, 4, v{t0}')
    for u in range(1, 4):
        p.e(f'v_add_u32 v{V_W3DMA+u}, {u*8*1024 - u*1024}, v{V_W3DMA}')

def allreduce_rows(p, vals, tmp):
    for swap in ('v_permlane16_swap_b32', 'v_permlane32_swap_b32'):
        for k, v in enumerate(vals): p.e(f'v_mov_b32 v{tmp+k}, v{v}')
        for k, v in enumerate(vals): p.e(f'{swap} v{v}, v{tmp+k}')
        for k, v in enumerate(vals): p.e(f'v_add_f32 v{v}, v{v}, v{tmp+k}')

def e_z2a():
    p = Prog(); p.comment('E_z2a')
    T = V_TMP
    gelu16(p, V_ACC0, 32, T)
    PK = 160
    pack(p, PK, V_ACC0, 32)
    L = V_LANE
    p.e(f'v_and_b32 v{T}, 31, v{L}\ns_lshl_b32 s48, s{S_W}, 5\nv_add_u32 v{T}, s48, v{T}\nv_mul_u32_u24 v{T}, 144, v{T}')
    p.e(f'v_lshrrev_b32 v{T+1}, 5, v{L}\nv_lshl_add_u32 v{T}, v{T+1}, 4, v{T}')
    p.e(f's_lshl_b32 s48, s{S_RH}, 6\ns_add_u32 s49, s48, {LDS_ZT}\ns_sub_u32 s50, {LDS_ZT + 64}, s48')
    p.e(f'v_add_u32 v{T+1}, s49, v{T}\nv_add_u32 v{T+2}, s50, v{T}')
    for X in range(2):
        for c in range(2):
            p.ds(f'ds_write_b128 v{T+1+X}, {vr(PK+8*X+4*c,4)} offset:{32*c}')
    p.drain_lgkm()
    return p

def e_z2b():
    p = Prog(); p.comment('E_z2b')
    T = V_TMP; L = V_LANE
    p.e(f'v_lshrrev_b32 v{T}, 2, v{L}\nv_mul_u32_u24 v{T}, 144, v{T}')
    p.e(f'v_and_b32 v{T+1}, 3, v{L}\nv_lshl_add_u32 v{T}, v{T+1}, 3, v{T}')
    p.e(f's_lshl_b32 s48, s{S_W}, 5\ns_add_u32 s48, s48, {LDS_ZT}\nv_add_u32 v{T}, s48, v{T}')
    D = 160
    tk = [p.ds(f'ds_read_b64_tr_b16 {vr(D+2*k,2)}, v{T} offset:{2304*k}') for k in range(7)]
    S, Q, ones = T+2, T+3, T+6
    p.e(f'v_mov_b32 v{ones}, 0x3f803f80\nv_mov_b32 v{S}, 0\nv_mov_b32 v{Q}, 0\nv_mov_b32 v{T+7}, 0\nv_mov_b32 v{T+8}, 0')
    for k in range(7):
        p.wait_lgkm(tk[k])
        p.e(f'v_dot2_f32_bf16 v{S}, v{D+2*k}, v{ones}, v{S}\nv_dot2_f32_bf16 v{Q}, v{D+2*k}, v{D+2*k}, v{Q}')
        p.e(f'v_dot2_f32_bf16 v{T+7}, v{D+2*k+1}, v{ones}, v{T+7}\nv_dot2_f32_bf16 v{T+8}, v{D+2*k+1}, v{D+2*k+1}, v{T+8}')
    p.e(f'v_add_f32 v{S}, v{S}, v{T+7}\nv_add_f32 v{Q}, v{Q}, v{T+8}')
    allreduce_rows(p, [S, Q], T+9)
    p.e(f'v_mov_b32 v{T+4}, s{S_TAG}\nv_mov_b32 v{T+5}, s{S_TAG}')
    p.e(f's_lshl_b32 s48, s{S_I}, 3\ns_add_u32 s48, s48, s{S_J}\ns_lshl_b32 s48, s48, 10\ns_lshl_b32 s49, s{S_W}, 8\ns_add_u32 s48, s48, s49\ns_add_u32 s48, s48, {WS_S1}')
    p.e(f'v_lshlrev_b32 v{T+7}, 4, v{L}')
    p.e('s_mov_b64 exec, 0xffff')
    p.vm(f'buffer_store_dwordx4 {vr(S,4)}, v{T+7}, {srd(SRD_WS)}, s48 offen sc1')
    p.e('s_mov_b64 exec, -1')
    return p

def s1_gather():
    p = Prog(); p.comment('S1 gather')
    T = V_TMP; L = V_LANE
    p.e(f'v_and_b32 v{T}, 15, v{L}\nv_lshlrev_b32 v{T}, 4, v{T}\nv_lshrrev_b32 v{T+1}, 4, v{L}\nv_lshl_add_u32 v{T}, v{T+1}, 11, v{T}')
    p.e(f's_lshl_b32 s48, s{S_I}, 13\ns_lshl_b32 s49, s{S_W}, 8\ns_add_u32 s48, s48, s49\ns_add_u32 s48, s48, {WS_S1}')
    l0, l1 = label('s1'), label('s1ok')
    G0, G1 = T+4, T+8
    p.e('s_mov_b32 s51, 0')
    p.e(f'{l0}:')
    p.vm(f'buffer_load_dwordx4 {vr(G0,4)}, v{T}, {srd(SRD_WS)}, s48 offen sc1')
    p.vm(f'buffer_load_dwordx4 {vr(G1,4)}, v{T}, {srd(SRD_WS)}, s48 offen offset:1024 sc1')
    p.e('s_waitcnt vmcnt(0)')
    p.e(f'v_cmp_ne_u32 vcc, s{S_TAG}, v{G0+2}\nv_cmp_ne_u32 s[52:53], s{S_TAG}, v{G1+3}')
    p.e(f's_or_b64 vcc, vcc, s[52:53]')
    p.e(f'v_cmp_ne_u32 s[52:53], s{S_TAG}, v{G0+3}\ns_or_b64 vcc, vcc, s[52:53]')
    p.e(f'v_cmp_ne_u32 s[52:53], s{S_TAG}, v{G1+2}\ns_or_b64 vcc, vcc, s[52:53]')
    p.e(f's_add_u32 s51, s51, 1')
    p.e(f's_cbranch_vccz {l1}')
    p.e(f's_sleep 4\ns_cmp_lt_u32 s51, 0x40000\ns_cbranch_scc1 {l0}')
    p.e(f'{l1}:')
    S, Q = G0, G0+1
    p.e(f'v_add_f32 v{S}, v{S}, v{G1}\nv_add_f32 v{Q}, v{Q}, v{G1+1}')
    allreduce_rows(p, [S, Q], T+12)
    p.e(f'v_mul_f32 v{S}, {f2u(1/896):#x}, v{S}\nv_mul_f32 v{Q}, {f2u(1/896):#x}, v{Q}')
    p.e(f'v_fma_f32 v{Q}, -v{S}, v{S}, v{Q}\nv_max_f32 v{Q}, 0, v{Q}\nv_add_f32 v{Q}, {f2u(1e-5):#x}, v{Q}')
    p.e(f'v_rsq_f32 v{Q}, v{Q}')
    p.e(f'v_mul_f32 v{S}, v{S}, v{Q}\nv_sub_f32 v{S}, 0, v{S}')
    p.e(f'v_and_b32 v{T}, 15, v{L}\nv_lshlrev_b32 v{T}, 2, v{T}\ns_lshl_b32 s48, s{S_W}, 6\ns_add_u32 s48, s48, {LDS_AB}\nv_add_u32 v{T}, s48, v{T}')
    p.e('s_mov_b64 exec, 0xffff')
    p.ds(f'ds_write_b32 v{T}, v{Q}'); p.ds(f'ds_write_b32 v{T}, v{S} offset:256')
    p.e('s_mov_b64 exec, -1')
    p.drain_lgkm()
    return p

def e_z2c():
    p = Prog(); p.comment('E_z2c')
    T = V_TMP; L = V_LANE
    p.e(f'v_lshrrev_b32 v{T}, 5, v{L}\nv_lshlrev_b32 v{T}, 5, v{T}')
    p.e(f's_lshl_b32 s48, s{S_RH}, 7\ns_add_u32 s49, s48, {LDS_AB}\ns_sub_u32 s50, {LDS_AB + 128}, s48')
    p.e(f'v_add_u32 v{T+1}, s49, v{T}\nv_add_u32 v{T+2}, s50, v{T}')
    V = T+3
    p.e(f'v_lshlrev_b32 v{V}, 4, v{L}')
    p.e(f'v_and_b32 v{T+4}, 15, v{L}\nv_lshlrev_b32 v{T+4}, 4, v{T+4}\nv_lshrrev_b32 v{T+5}, 5, v{L}\nv_lshl_add_u32 v{T+4}, v{T+5}, 8, v{T+4}')
    p.e(f'v_mov_b32 v{T+5}, 0x7f000000\nv_cndmask_b32 v{T+4}, v{T+4}, v{T+5}, s[{S_MASK16}:{S_MASK16+1}]')
    p.e(f's_cmp_eq_u32 s{S_W}, 3\ns_cselect_b64 s[52:53], -1, 0')
    p.e(f'v_cndmask_b32 v{V}, v{V}, v{T+4}, s[52:53]')
    p.e(f's_lshl_b32 s54, s{S_J}, 19\ns_lshl_b32 s55, s{S_W}, 17\ns_add_u32 s54, s54, s55\ns_lshl_b32 s55, s{S_I}, 12\ns_add_u32 s54, s54, s55\ns_add_u32 s54, s54, {WS_Z2N}')
    p.e(f's_lshl_b32 s55, s{S_RH}, 11\ns_add_u32 s52, s54, s55\ns_sub_u32 s53, s54, s55\ns_add_u32 s53, s53, 2048')
    A_, B_ = T+8, T+16
    toks = []
    for X in range(2):
        for c in range(2):
            ta = [p.ds(f'ds_read_b128 {vr(A_+4*k,4)}, v{T+1+X} offset:{64*c + 16*k}') for k in range(2)]
            tb = [p.ds(f'ds_read_b128 {vr(B_+4*k,4)}, v{T+1+X} offset:{256 + 64*c + 16*k}') for k in range(2)]
            p.wait_lgkm(ta + tb)
            r0 = V_ACC0 + 16*X + 8*c
            for k in range(4):
                p.e(f'v_pk_fma_f32 {vr(r0+2*k,2)}, {vr(r0+2*k,2)}, {vr(A_+2*k,2)}, {vr(B_+2*k,2)}')
            O = T+24 + 4*((2*X+c) & 1)
            pack(p, O, r0, 8)
            toks.append(p.vm(f'buffer_store_dwordx4 {vr(O,4)}, v{V}, {srd(SRD_WS)}, s{52+X} offen offset:{1024*c} sc1'))
    return p, toks

def e_kv():
    p = Prog(); p.comment('E_kv')
    T = V_TMP; L = V_LANE
    K_, V_ = V_ACC1, V_ACC1+16
    phi16(p, K_, 16, T)
    PKk, PKv = 160, 168
    pack(p, PKk, K_, 16); pack(p, PKv, V_, 16)
    ones = T+8
    for k in range(4): p.e(f'v_mov_b32 v{ones+k}, 0x3f803f80')
    M = 'v_mfma_f32_32x32x16_bf16'
    p.e(f'{M} {vr(K_,16)}, {vr(PKk,4)}, {vr(PKv,4)}, 0')
    p.e(f'{M} {vr(V_,16)}, {vr(ones,4)}, {vr(PKk,4)}, 0')
    p.e(f'{M} {vr(K_,16)}, {vr(PKk+4,4)}, {vr(PKv+4,4)}, {vr(K_,16)}')
    p.e(f'{M} {vr(V_,16)}, {vr(ones,4)}, {vr(PKk+4,4)}, {vr(V_,16)}')
    p.e(f'v_and_b32 v{T}, 3, v{L}\nv_lshlrev_b32 v{T}, 7, v{T}\ns_lshl_b32 s52, s{S_J}, 9\ns_add_u32 s52, s52, {WS_ZF}')
    poll(p, T, 52, T+1, 'zf')
    for i in range(8):
        p.e(f'v_cndmask_b32 v{T+12+i}, v{K_+i}, v{K_+8+i}, s[{S_MASK16}:{S_MASK16+1}]')
    p.e(f'v_lshlrev_b32 v{T}, 2, v{L}')
    p.e(f's_lshl_b32 s52, s{S_J}, 1\ns_add_u32 s52, s52, s{S_CH}\ns_lshl_b32 s53, s52, 7\ns_add_u32 s53, s53, {WS_ZA}\ns_lshl_b32 s52, s52, 11\ns_add_u32 s52, s52, {WS_KV}')
    toks = []
    for i in range(8):
        toks.append(p.vm(f'buffer_atomic_add_f32 v{T+12+i}, v{T}, {srd(SRD_WS)}, s52 offen offset:{256*i}'))
    p.e('s_mov_b32 exec_hi, 0')
    toks.append(p.vm(f'buffer_atomic_add_f32 v{V_}, v{T}, {srd(SRD_WS)}, s53 offen'))
    p.e('s_mov_b32 exec_hi, -1')
    return p, toks

def e_z1():
    p = Prog(); p.comment('E_z1')
    gelu16(p, V_ACC2, 32, V_TMP)
    pack(p, V_Z1P, V_ACC2, 32)
    return p

def e_q():
    p = Prog(); p.comment('E_q')
    phi16(p, V_ACCQ, 16, V_TMP)
    pack(p, V_PQ, V_ACCQ, 16)
    return p

def act_voffset(p, dst, t0):
    L = V_LANE
    p.e(f'v_bfe_u32 v{t0}, v{L}, 4, 1\nv_mul_u32_u24 v{dst}, {ACT_T}, v{t0}')
    p.e(f'v_lshrrev_b32 v{t0}, 5, v{L}\nv_lshl_add_u32 v{dst}, v{t0}, 8, v{dst}')
    p.e(f'v_and_b32 v{t0}, 15, v{L}\nv_lshl_add_u32 v{dst}, v{t0}, 4, v{dst}')

def o_compute(p):
    p.comment('o compute')
    T = V_TMP; L = V_LANE
    KV = T; ZF = T+8
    p.e(f'v_lshlrev_b32 v{T+40}, 2, v{L}')
    p.e(f's_lshl_b32 s52, s{S_J}, 1\ns_add_u32 s52, s52, s{S_CH}\ns_lshl_b32 s53, s52, 7\ns_add_u32 s53, s53, {WS_ZA}\ns_lshl_b32 s52, s52, 11\ns_add_u32 s52, s52, {WS_KV}')
    tk = [p.vm(f'buffer_load_dword v{KV+i}, v{T+40}, {srd(SRD_WS)}, s52 offen offset:{256*i} sc1') for i in range(8)]
    p.e(f'v_bfe_u32 v{T+41}, v{L}, 4, 1\nv_xor_b32 v{T+41}, 1, v{T+41}\nv_lshlrev_b32 v{T+41}, 6, v{T+41}\nv_lshrrev_b32 v{T+39}, 5, v{L}\nv_lshl_add_u32 v{T+41}, v{T+39}, 4, v{T+41}')
    tk.append(p.vm(f'buffer_load_dwordx4 {vr(ZF,4)}, v{T+41}, {srd(SRD_WS)}, s53 offen sc1'))
    tk.append(p.vm(f'buffer_load_dwordx4 {vr(ZF+4,4)}, v{T+41}, {srd(SRD_WS)}, s53 offen offset:32 sc1'))
    p.wait_vm(tk)
    KP, ZP = T+16, T+20
    pack(p, KP, KV, 8); pack(p, ZP, ZF, 8)
    Aa, Ab = T+24, T+28
    m = f's[{S_MASK16}:{S_MASK16+1}]'
    for k in range(4):
        p.e(f'v_cndmask_b32 v{Aa+k}, v{KP+k}, v{ZP+k}, {m}')
        p.e(f'v_cndmask_b32 v{Ab+k}, v{ZP+k}, v{KP+k}, {m}')
    M = 'v_mfma_f32_32x32x16_bf16'
    Da, Db = V_ACC1, V_ACC1+16
    p.e(f'{M} {vr(Da,16)}, {vr(Aa,4)}, {vr(V_PQ,4)}, 0')
    p.e(f'{M} {vr(Db,16)}, {vr(Ab,4)}, {vr(V_PQ+4,4)}, 0')
    p.e(f'v_add_f32 v{T}, s{S_EPS6}, v{Da+8}\nv_add_f32 v{T+1}, s{S_EPS6}, v{Db}')
    p.e(f'v_rcp_f32 v{T}, v{T}\nv_rcp_f32 v{T+1}, v{T+1}')
    for i in range(8):
        p.e(f'v_mul_f32 v{Da+i}, v{Da+i}, v{T}\nv_mul_f32 v{Db+8+i}, v{Db+8+i}, v{T+1}')
    Oa, Ob = T+4, T+8
    pack(p, Oa, Da, 8); pack(p, Ob, Db+8, 8)
    act_voffset(p, T+12, T+13)
    p.e(f's_mul_i32 s52, s{S_I}, {ACT_I}\ns_mul_i32 s53, s{S_RH}, {2*ACT_T}\ns_add_u32 s52, s52, s53\ns_lshl_b32 s53, s{S_J}, 11\ns_add_u32 s52, s52, s53\ns_lshl_b32 s53, s{S_CH}, 10\ns_add_u32 s52, s52, s53\ns_add_u32 s52, s52, {WS_ACT}')
    t1 = p.vm(f'buffer_store_dwordx4 {vr(Oa,4)}, v{T+12}, {srd(SRD_WS)}, s52 offen sc1')
    t2 = p.vm(f'buffer_store_dwordx4 {vr(Ob,4)}, v{T+12}, {srd(SRD_WS)}, s52 offen offset:512 sc1')
    return [t1, t2]

V_SPRD = 20
V_SPF  = 28
V_Z2OFF = 18
ZRING = 32

def p2_setup(p):
    L = V_LANE; T = V_TMP
    p.e(f'v_and_b32 v{T}, 0x13, v{L}\nv_bfe_u32 v{T+1}, v{L}, 2, 1\nv_lshl_or_b32 v{T}, v{T+1}, 3, v{T}\nv_bfe_u32 v{T+1}, v{L}, 3, 1\nv_lshl_or_b32 v{T}, v{T+1}, 2, v{T}')
    p.e(f'v_bfe_u32 v{T+1}, v{T}, 1, 3\nv_lshrrev_b32 v{T+2}, 5, v{L}\nv_xor_b32 v{T+1}, v{T+1}, v{T+2}')
    p.e(f'v_lshlrev_b32 v{T}, 7, v{T}')
    p.e(f's_lshl_b32 s48, s{S_RH}, 12\ns_xor_b32 s49, s48, 4096')
    for beta in range(4):
        p.e(f'v_xor_b32 v{T+2}, {2*beta}, v{T+1}\nv_lshl_add_u32 v{T+2}, v{T+2}, 4, v{T}')
        p.e(f'v_add_u32 v{V_SPRD+beta}, s48, v{T+2}\nv_add_u32 v{V_SPRD+4+beta}, s49, v{T+2}')
    V = V_Z2OFF
    p.e(f'v_lshlrev_b32 v{V}, 4, v{L}')
    p.e(f'v_and_b32 v{T+4}, 15, v{L}\nv_lshlrev_b32 v{T+4}, 4, v{T+4}\nv_lshrrev_b32 v{T+5}, 5, v{L}\nv_lshl_add_u32 v{T+4}, v{T+5}, 8, v{T+4}')
    p.e(f's_cmp_eq_u32 s{S_W}, 3\ns_cselect_b64 s[52:53], -1, 0')
    p.e(f'v_cndmask_b32 v{V}, v{V}, v{T+4}, s[52:53]')
    p.e(f'v_lshrrev_b32 v{T}, 6, v{T}')
    p.e(f's_lshl_b32 s48, s{S_I}, 7\ns_lshl_b32 s49, s{S_RH}, 6\ns_add_u32 s50, s48, s49\ns_xor_b32 s49, s49, 64\ns_add_u32 s49, s48, s49')
    t1 = p.vm(f'buffer_load_ushort v{V_BSP}, v{T}, {srd(SRD_BSP)}, s50 offen')
    t2 = p.vm(f'buffer_load_ushort v{V_BSP+1}, v{T}, {srd(SRD_BSP)}, s49 offen')
    return [t1, t2]

S_Z2 = 86
def p2_main(p, cfg, dtoks):
    S0 = len(P1_STAGES)
    p.e(f's_lshl_b32 s{S_Z2}, s{S_J}, 19\ns_lshl_b32 s55, s{S_W}, 17\ns_add_u32 s{S_Z2}, s{S_Z2}, s55\ns_add_u32 s{S_Z2}, s{S_Z2}, {WS_Z2N}')
    ztok = {}
    def zload(b):
        if b >= 128: return
        if b % 4 == 0 and b > 0: p.e(f's_add_u32 s{S_Z2}, s{S_Z2}, 4096')
        ztok[b] = p.vm(f'buffer_load_dwordx4 {ar(4*(b % ZRING),4)}, v{V_Z2OFF}, {srd(SRD_WS)}, s{S_Z2} offen offset:{1024*(b%4)} sc1')
    for b in range(ZRING): zload(b)
    rt = {}
    def sp_reads(b):
        if b >= 128: return
        st, bl = b // 16, b % 16
        s = S0 + st
        f = V_SPF + 8*(b % 3)
        seg, beta = bl // 4, bl % 4
        if bl == 0:
            prev = SLOT[(s-1) % 4] if st > 0 else 0
            d = SLOT[s % 4] - prev
            for k in range(8):
                if d >= 0: p.e(f'v_add_u32 v{V_SPRD+k}, {d}, v{V_SPRD+k}')
                else: p.e(f'v_subrev_u32 v{V_SPRD+k}, {-d}, v{V_SPRD+k}')
        rt[b] = [p.ds(f'ds_read_b128 {vr(f+4*X,4)}, v{V_SPRD+4*X+beta} offset:{8192*seg}') for X in range(2)]
    sp_reads(0); sp_reads(1)
    M = 'v_mfma_f32_32x32x16_bf16'
    for b in range(128):
        st, bl = b // 16, b % 16
        s = S0 + st
        if bl == 14:
            p.comment(f'--- barrier for stage {s+1}')
            p.wait_vm(dtoks[s+1])
            p.e('s_barrier')
            if s + 3 == S0 + 8: w3_addr_setup(p)
            dma_stage(p, s+3, dtoks)
        sp_reads(b+2)
        p.wait_vm(ztok[b]); p.wait_lgkm(rt[b])
        f = V_SPF + 8*(b % 3)
        for X in range(2):
            acc = V_ACC0 + 16*X
            p.e(f'{M} {vr(acc,16)}, {ar(4*(b % ZRING),4)}, {vr(f+4*X,4)}, {"0" if b == 0 else vr(acc,16)}')
        zload(b + ZRING)

def p2_epilogue(p, btoks):
    p.comment('h epilogue')
    T = V_TMP
    p.wait_vm(btoks)
    p.e(f'v_lshlrev_b32 v{V_BSP}, 16, v{V_BSP}\nv_lshlrev_b32 v{V_BSP+1}, 16, v{V_BSP+1}')
    act_voffset(p, T, T+1)
    p.e(f's_mul_i32 s52, s{S_I}, {ACT_I}\ns_mul_i32 s53, s{S_J}, {7*512}\ns_add_u32 s52, s52, s53\ns_lshl_b32 s53, s{S_W}, 10\ns_add_u32 s52, s52, s53\ns_add_u32 s52, s52, {WS_ACT + 32*512}')
    p.e(f's_mul_i32 s53, s{S_RH}, {2*ACT_T}\ns_add_u32 s54, s52, s53\ns_sub_u32 s55, s52, s53\ns_add_u32 s55, s55, {2*ACT_T}')
    p.e(f's_add_u32 s48, s54, 512\ns_add_u32 s49, s55, 512\ns_cmp_eq_u32 s{S_W}, 3\ns_cselect_b32 s48, 0x7f000000, s48\ns_cselect_b32 s49, 0x7f000000, s49')
    toks = []
    n = 0
    for X in range(2):
        for c in range(2):
            O = T+4 + 4*(n & 1); n += 1
            for d in range(4):
                zp = V_Z1P + 8*X + 4*c + d
                g = V_ACC0 + 16*X + 8*c + 2*d
                t = T+12 + 2*(d & 1)
                p.e(f'v_lshlrev_b32 v{t}, 16, v{zp}\nv_and_b32 v{t+1}, 0xffff0000, v{zp}')
                p.e(f'v_add_f32 v{g}, v{g}, v{V_BSP+X}\nv_add_f32 v{g+1}, v{g+1}, v{V_BSP+X}')
                p.e(f'v_mul_f32 v{g}, v{g}, v{t}\nv_mul_f32 v{g+1}, v{g+1}, v{t+1}')
                p.e(f'v_cvt_pk_bf16_f32 v{O+d}, v{g}, v{g+1}')
            so = (54 + X) if c == 0 else (48 + X)
            toks.append(p.vm(f'buffer_store_dwordx4 {vr(O,4)}, v{T}, {srd(SRD_WS)}, s{so} offen sc1'))
    return toks

V_W3RD = 20
V_W3F  = 24
V_S3   = 64
V_B3   = 80
V_XR   = 96
S_A3 = 87
def p3(p, cfg, dtoks, htoks):
    S0 = len(P1_STAGES) + 8
    L = V_LANE; T = V_TMP
    p.e(f'v_lshrrev_b32 v{T}, 5, v{L}\nv_bfe_u32 v{T+1}, v{L}, 4, 1\nv_bfe_u32 v{T+2}, v{L}, 2, 2')
    p.e(f'v_lshlrev_b32 v{T+3}, 4, v{T}\nv_lshl_add_u32 v{T+3}, v{T+1}, 2, v{T+3}\nv_add_u32 v{T+3}, v{T+3}, v{T+2}\nv_lshlrev_b32 v{T+3}, 7, v{T+3}')
    p.e(f'v_and_b32 v{T+4}, 3, v{L}\nv_lshl_add_u32 v{T+3}, v{T+4}, 3, v{T+3}')
    p.e(f'v_lshrrev_b32 v{T+2}, 1, v{T+2}\nv_lshl_add_u32 v{T+2}, v{T+1}, 1, v{T+2}')
    for q in range(4):
        p.e(f'v_xor_b32 v{T+4}, {q}, v{T+2}\nv_lshl_add_u32 v{V_W3RD+q}, v{T+4}, 5, v{T+3}')
    p.e(f'v_and_b32 v{T}, 15, v{L}\ns_and_b32 s48, s{S_W}, 1\ns_lshl_b32 s48, s48, 4\nv_add_u32 v{T}, s48, v{T}')
    p.e(f'v_and_b32 v{T+1}, 0x13, v{T}\nv_bfe_u32 v{T+2}, v{T}, 2, 1\nv_lshl_or_b32 v{T+1}, v{T+2}, 3, v{T+1}\nv_bfe_u32 v{T+2}, v{T}, 3, 1\nv_lshl_or_b32 v{T+1}, v{T+2}, 2, v{T+1}')
    p.e(f'v_lshlrev_b32 v{T+1}, 10, v{T+1}\nv_lshrrev_b32 v{T+2}, 4, v{L}\nv_lshl_add_u32 v{19}, v{T+2}, 3, v{T+1}')
    p.e(f's_lshl_b32 s88, s{S_I}, 16\ns_lshr_b32 s49, s{S_W}, 1\ns_lshl_b32 s49, s49, 15\ns_add_u32 s88, s88, s49\ns_lshl_b32 s49, s{S_J}, 7\ns_add_u32 s88, s88, s49')
    xt = [p.vm(f'buffer_load_dwordx2 {vr(V_XR+2*q,2)}, v19, {srd(SRD_X)}, s88 offen offset:{32*q}') for q in range(4)]
    p.e(f's_mul_i32 s{S_A3}, s{S_I}, {ACT_I}\ns_mul_i32 s49, s{S_W}, {ACT_T}\ns_add_u32 s{S_A3}, s{S_A3}, s49\ns_add_u32 s{S_A3}, s{S_A3}, {WS_ACT}')
    p.e(f'v_lshlrev_b32 v18, 4, v{L}')
    at = {}
    def aload(kp):
        if kp % 4 == 0 and kp > 0: p.e(f's_add_u32 s{S_A3}, s{S_A3}, 4096')
        at[kp] = p.vm(f'buffer_load_dwordx4 {ar(4*kp,4)}, v18, {srd(SRD_WS)}, s{S_A3} offen offset:{1024*(kp%4)} sc1')
    p.e(f'v_and_b32 v{T}, 7, v{L}\nv_lshlrev_b32 v{T}, 7, v{T}\ns_lshl_b32 s52, s{S_I}, 10\ns_add_u32 s52, s52, {WS_F3}')
    poll(p, T, 52, T+1, 's3')
    for kp in range(16): aload(kp)
    rt = {}
    cur = [None]
    def wreads(kp):
        if kp >= 44: return
        s = S0 + kp // 8; kl = kp % 8
        if kl == 0:
            prev = cur[0] if cur[0] is not None else 0
            d = SLOT[s % 4] - prev; cur[0] = SLOT[s % 4]
            for q in range(4):
                if d >= 0: p.e(f'v_add_u32 v{V_W3RD+q}, {d}, v{V_W3RD+q}')
                else: p.e(f'v_subrev_u32 v{V_W3RD+q}, {-d}, v{V_W3RD+q}')
        f = V_W3F + 16*(kp % 2)
        rt[kp] = [p.ds(f'ds_read_b64_tr_b16 {vr(f+4*q+2*t,2)}, v{V_W3RD+q} offset:{4096*kl + 1024*t}') for q in range(4) for t in range(2)]
    M = 'v_mfma_f32_16x16x32_bf16'
    wreads(0)
    for kp in range(44):
        s = S0 + kp // 8; kl = kp % 8
        if kl == 7 and s + 1 < len(ALL_STAGES):
            p.comment(f'--- barrier for stage {s+1}')
            p.wait_vm(dtoks[s+1])
            p.e('s_barrier')
            dma_stage(p, s+3, dtoks)
        if kp == 15:
            p.e(f'v_and_b32 v{T}, 7, v{L}\nv_lshlrev_b32 v{T}, 7, v{T}\ns_lshl_b32 s52, s{S_I}, 10\ns_add_u32 s52, s52, {WS_F4}')
            poll(p, T, 52, T+1, 's4')
            for k2 in range(16, 44): aload(k2)
        wreads(kp+1)
        p.wait_vm(at[kp]); p.wait_lgkm(rt[kp])
        f = V_W3F + 16*(kp % 2)
        acc = V_S3 if kp < 16 else V_B3
        first = kp in (0, 16)
        for q in range(4):
            p.e(f'{M} {vr(acc+4*q,4)}, {vr(f+4*q,4)}, {ar(4*kp,4)}, {"0" if first else vr(acc+4*q,4)}')
    p.wait_vm(xt)
    for q in range(4):
        for r in range(4):
            B_, S_ = V_B3+4*q+r, V_S3+4*q+r
            t = T + r
            p.e(f'v_mul_f32 v{t}, s{S_L2E}, v{B_}\nv_sub_f32 v{t}, 0, v{t}')
        for r in range(4): p.e(f'v_exp_f32 v{T+r}, v{T+r}')
        for r in range(4): p.e(f'v_add_f32 v{T+r}, 1.0, v{T+r}')
        for r in range(4): p.e(f'v_rcp_f32 v{T+r}, v{T+r}')
        for r in range(4): p.e(f'v_mul_f32 v{T+r}, v{T+r}, v{V_B3+4*q+r}')
        for r in range(4): p.e(f'v_mul_f32 v{T+r}, v{T+r}, v{V_S3+4*q+r}')
        for d in range(2):
            xr = V_XR + 2*q + d
            p.e(f'v_lshlrev_b32 v{T+4}, 16, v{xr}\nv_and_b32 v{T+5}, 0xffff0000, v{xr}')
            p.e(f'v_add_f32 v{T+2*d}, v{T+2*d}, v{T+4}\nv_add_f32 v{T+2*d+1}, v{T+2*d+1}, v{T+5}')
        p.e(f'v_cvt_pk_bf16_f32 v{T+6+2*(q&1)}, v{T}, v{T+1}\nv_cvt_pk_bf16_f32 v{T+7+2*(q&1)}, v{T+2}, v{T+3}')
        p.vm(f'buffer_store_dwordx2 {vr(T+6+2*(q&1),2)}, v19, {srd(SRD_OUT)}, s88 offen offset:{32*q}')

NSTAMP = 7
def stamp(p, cfg, k):
    if cfg.stamps: p.e(f's_memtime s[{88+2*k}:{89+2*k}]') if False else None

def build(cfg):
    global V_T
    p = Prog()
    prologue(p, cfg)
    dtoks = {}
    et, zt, TE = epoch_and_zero(p)
    xt, XB, TMP, vwb = p0_x(p, cfg, dtoks)
    saveT = V_T; V_T = 250
    addr_setup(p)
    V_T = saveT
    dma_stage(p, 0, dtoks); dma_stage(p, 1, dtoks)
    epoch_finish(p, et, zt, TE)
    p0_norm(p, cfg, xt, XB, TMP, vwb)
    p.drain_lgkm()
    p.wait_vm(dtoks[0])
    p.e('s_barrier')
    xtoks = xfrag_reads(p)
    if cfg.stop == 'xn':
        p.drain_lgkm()
        dump_regs(p, [f'a{k}' for k in range(128)], cfg)
        return p
    side = {}; pre = {}
    if cfg.stop == 'p1raw':
        p1_main(p, cfg, dtoks, xtoks, side, pre)
        dump_regs(p, [f'v{k}' for k in range(V_ACC0, V_ACC0+96)] + [f'v{k}' for k in range(V_ACCQ, V_ACCQ+16)], cfg)
        return p
    side[3] = e_z2a()
    side[4] = e_z2b()
    kvp, kvt = e_kv()
    g = s1_gather()
    s7 = Prog(); s7.extend(kvp); s7.extend(g); side[7] = s7
    zc, z2t = e_z2c()
    side[8] = zc
    side[11] = e_z1()
    side[13] = e_q()
    p1_main(p, cfg, dtoks, xtoks, side, pre)
    p.drain_vm()
    p.e('s_barrier')
    p.e(f's_lshl_b32 s52, s{S_J}, 5\ns_add_u32 s52, s52, s{S_I}\ns_lshl_b32 s52, s52, 7\ns_add_u32 s52, s52, {WS_F2}')
    p.e(f's_cmp_eq_u32 s{S_W}, 0\ns_cselect_b32 s52, s52, 0x7f000000')
    flag_store(p, 52, V_TMP)
    if cfg.stop == 'p1':
        dump_regs(p, [f'v{k}' for k in range(V_Z1P, V_Z1P+16)] + [f'v{k}' for k in range(V_PQ, V_PQ+8)], cfg)
        return p
    btoks = p2_setup(p)
    T = V_TMP
    p.e(f'v_and_b32 v{T+44}, 31, v{V_LANE}\nv_lshlrev_b32 v{T+44}, 7, v{T+44}\ns_lshl_b32 s52, s{S_J}, 12\ns_add_u32 s52, s52, {WS_F2}')
    poll(p, T+44, 52, T+45, 's2')
    p.e(f's_or_b32 s52, s2, s{S_W}\ns_cmp_eq_u32 s52, 0\ns_cselect_b32 s52, 0, 0x7f000000')
    flag_store(p, 52, T+44)
    ot = o_compute(p)
    p.wait_vm(ot)
    p.e('s_barrier')
    p.e(f's_lshl_b32 s52, s{S_I}, 3\ns_add_u32 s52, s52, s{S_J}\ns_lshl_b32 s52, s52, 7\ns_add_u32 s52, s52, {WS_F3}')
    p.e(f's_cmp_eq_u32 s{S_W}, 0\ns_cselect_b32 s52, s52, 0x7f000000')
    flag_store(p, 52, V_TMP)
    p2_main(p, cfg, dtoks)
    ht = p2_epilogue(p, btoks)
    p.wait_vm(ht)
    p.e('s_barrier')
    p.e(f's_lshl_b32 s52, s{S_I}, 3\ns_add_u32 s52, s52, s{S_J}\ns_lshl_b32 s52, s52, 7\ns_add_u32 s52, s52, {WS_F4}')
    p.e(f's_cmp_eq_u32 s{S_W}, 0\ns_cselect_b32 s52, s52, 0x7f000000')
    flag_store(p, 52, V_TMP)
    if cfg.stop == 'p2':
        p.drain_vm()
        return p
    p3(p, cfg, dtoks, ht)
    return p

def emit(cfg, path):
    p = build(cfg)
    body = finalize(p, verbose=True)
    hdr = open('cdna_kernels/%s.s.ref' % NAME).read().split('; Override launch')[0]
    txt = hdr + f"""; @launch grid=(256,1,1) block=(256,1,1) lds={LDS_TOTAL}
.amdgcn_target "amdgcn-amd-amdhsa--gfx950"
.text
.globl {NAME}_kernel
.p2align 8
.type {NAME}_kernel,@function
{NAME}_kernel:
{body}
L_end:
    s_endpgm
.section .rodata,"a"
.p2align 6
.amdhsa_kernel {NAME}_kernel
  .amdhsa_next_free_vgpr 512
  .amdhsa_next_free_sgpr 102
  .amdhsa_accum_offset 256
  .amdhsa_group_segment_fixed_size 0
  .amdhsa_kernarg_size 88
  .amdhsa_user_sgpr_count 2
  .amdhsa_user_sgpr_kernarg_segment_ptr 1
  .amdhsa_system_sgpr_workgroup_id_x 1
.end_amdhsa_kernel
"""
    open(path, 'w').write(txt)
    return txt

if __name__ == '__main__':
    cfg = Cfg()
    if len(sys.argv) > 2: cfg.stop = sys.argv[2]
    emit(cfg, sys.argv[1] if len(sys.argv) > 1 else 'k.s')
```

```python
import re

REG_RE = re.compile(r'^(-|\|)?([vas])(?:(\d+)|\[(\d+):(\d+)\])\|?$')

def regs_of(tok):
    tok = tok.strip()
    t = tok
    if t.startswith('neg(') or t.startswith('abs('): t = t[4:-1]
    t = t.lstrip('-').strip('|')
    if t == 'vcc': return [('s', 106), ('s', 107)]
    if t == 'vcc_lo': return [('s', 106)]
    if t == 'vcc_hi': return [('s', 107)]
    if t == 'exec': return [('s', 126), ('s', 127)]
    if t == 'exec_lo': return [('s', 126)]
    if t == 'exec_hi': return [('s', 127)]
    if t == 'm0': return [('s', 124)]
    m = re.match(r'^([vas])(\d+)$', t)
    if m: return [(m.group(1), int(m.group(2)))]
    m = re.match(r'^([vas])\[(\d+):(\d+)\]$', t)
    if m: return [(m.group(1), k) for k in range(int(m.group(2)), int(m.group(3)) + 1)]
    return []

def split_ops(s):
    out, depth, cur = [], 0, ''
    for ch in s:
        if ch == '[' or ch == '(': depth += 1
        if ch == ']' or ch == ')': depth -= 1
        if ch == ',' and depth == 0:
            out.append(cur.strip()); cur = ''
        else: cur += ch
    if cur.strip(): out.append(cur.strip())
    return out

TRANS = ('v_exp_f32', 'v_log_f32', 'v_rcp_f32', 'v_rsq_f32', 'v_sqrt_f32', 'v_sin_f32', 'v_cos_f32')

class Ins:
    __slots__ = ('text', 'op', 'kind', 'dst', 'src', 'tok', 'comment', 'passes', 'dpp', 'wide_store', 'srcC', 'srcAB', 'lds_dma', 'grp', 'nomodel')
    def __init__(self, text, tok=None, kind=None):
        self.text = text.strip(); self.tok = tok; self.dst = []; self.src = []; self.grp = None; self.nomodel = False
        self.passes = 0; self.dpp = False; self.wide_store = False; self.srcC = []; self.srcAB = []; self.lds_dma = False
        if kind is not None:
            self.kind = kind; self.op = kind; return
        t = self.text.split(';')[0].strip()
        if t.endswith(':'):
            self.kind = 'label'; self.op = 'label'; return
        parts = t.split(None, 1)
        op = parts[0]; self.op = op
        rest = parts[1] if len(parts) > 1 else ''
        ops = split_ops(rest)
        mods = ''
        if ops:
            last = ops[-1].split()
            ops[-1] = last[0]; mods = ' '.join(last[1:])
        base = op
        for suf in ('_e32', '_e64', '_dpp', '_sdwa'):
            if base.endswith(suf): base = base[:-len(suf)]
        R = [regs_of(o) for o in ops]
        flat = lambda xs: [r for x in xs for r in x]
        if op.startswith('v_mfma'):
            self.kind = 'mfma'; self.dst = R[0]; self.srcAB = R[1] + R[2]; self.srcC = R[3]; self.src = R[1] + R[2] + R[3]
            self.passes = 8 if '32x32' in op else 4
        elif op.startswith('v_'):
            self.kind = 'trans' if base in TRANS else 'valu'
            self.dpp = ('_dpp' in op) or any(x in mods for x in ('quad_perm', 'row_shr', 'row_shl', 'row_ror', 'row_mirror', 'row_half_mirror', 'row_bcast', 'wave_'))
            if base.startswith('v_cmp'):
                self.dst = R[0]; self.src = flat(R[1:])
                if base.startswith('v_cmpx'): self.dst = self.dst + [('s', 126), ('s', 127)]
            elif base in ('v_readfirstlane_b32', 'v_readlane_b32'):
                self.dst = R[0]; self.src = flat(R[1:]); self.kind = 'readlane'
            elif base.startswith('v_permlane'):
                self.dst = R[0] + R[1]; self.src = R[0] + R[1]; self.kind = 'permlane'
            elif base in ('v_add_co_u32', 'v_sub_co_u32', 'v_addc_co_u32', 'v_subb_co_u32'):
                self.dst = R[0] + R[1]; self.src = flat(R[2:])
            elif base in ('v_fmac_f32', 'v_dot2c_f32_bf16', 'v_mac_f32', 'v_pk_fmac_f16'):
                self.dst = R[0]; self.src = flat(R)
            elif base == 'v_cndmask_b32':
                self.dst = R[0]; self.src = flat(R[1:])
                if len(ops) == 3: self.src += [('s', 106), ('s', 107)]
            elif base == 'v_nop':
                pass
            else:
                self.dst = R[0]; self.src = flat(R[1:])
        elif op.startswith('ds_'):
            self.kind = 'ds'
            if op.startswith('ds_read') or op.startswith('ds_bpermute') or op.startswith('ds_swizzle') or op.startswith('ds_permute'):
                self.dst = R[0]; self.src = flat(R[1:])
            else:
                self.src = flat(R)
        elif op.startswith('buffer_') or op.startswith('global_'):
            self.kind = 'vmem'
            is_lds = (' lds' in (' ' + mods)) or '_lds_' in op
            if op.startswith('buffer_inv') or op.startswith('buffer_wbl2'):
                pass
            elif is_lds:
                self.src = flat(R) + [('s', 124)]; self.lds_dma = True
            elif 'load' in op:
                self.dst = R[0]; self.src = flat(R[1:])
            elif 'atomic' in op and 'sc0' in mods.split():
                self.dst = R[0]; self.src = flat(R)
            else:
                self.src = flat(R)
                if 'x4' in op or 'x3' in op: self.wide_store = True
        elif op.startswith('s_'):
            if op in ('s_waitcnt',): self.kind = 'wait'
            elif op == 's_nop': self.kind = 'nop'
            elif op in ('s_barrier',): self.kind = 'barrier'
            elif op.startswith('s_cbranch') or op == 's_branch' or op == 's_endpgm': self.kind = 'branch'
            elif op.startswith('s_cmp') or op in ('s_sleep', 's_setprio', 's_bitcmp0_b32', 's_bitcmp1_b32'): self.kind = 'salu'; self.src = flat(R)
            elif op.startswith('s_load') or op.startswith('s_memtime') or op.startswith('s_memrealtime') or op.startswith('s_buffer_load'):
                self.kind = 'smem'; self.dst = R[0]; self.src = flat(R[1:])
            else:
                self.kind = 'salu'; self.dst = R[0] if R else []; self.src = flat(R[1:])
        else:
            self.kind = 'other'

class Tok:
    __slots__ = ('name',)
    def __init__(self, name=''): self.name = name

class Prog:
    def __init__(self): self.L = []
    def e(self, text, tok=None):
        for line in text.split('\n'):
            line = line.strip()
            if not line: continue
            self.L.append(Ins(line, tok))
        return tok
    def vm(self, text, tok=None):
        tok = tok or Tok(text[:30]); self.L.append(Ins(text, tok)); return tok
    def ds(self, text, tok=None):
        tok = tok or Tok(text[:30]); self.L.append(Ins(text, tok)); return tok
    def wait_vm(self, tok):
        if isinstance(tok, (list, tuple)) and len(tok) == 0: return
        self.L.append(Ins('', tok, kind='waitvm'))
    def wait_lgkm(self, tok): self.L.append(Ins('', tok, kind='waitlgkm'))
    def drain_vm(self): self.L.append(Ins('', None, kind='drainvm'))
    def drain_lgkm(self): self.L.append(Ins('', None, kind='drainlgkm'))
    def raw(self, text): self.L.append(Ins(text, None, kind='raw'))
    def comment(self, text): self.L.append(Ins('; ' + text, None, kind='raw'))
    def extend(self, other): self.L.extend(other.L if isinstance(other, Prog) else other)
    def __len__(self): return len(self.L)
    def begin_bundle(self): self._b0 = len(self.L)
    def end_bundle(self):
        g = object()
        for ins in self.L[self._b0:]: ins.grp = g
    def vm_nomodel(self, text):
        i = Ins(text); i.nomodel = True; self.L.append(i)
    def e_nomodel(self, text):
        for line in text.split('\n'):
            i = Ins(line); i.nomodel = True; self.L.append(i)

def interleave(main, side, start=0, end=None, after_kinds=('mfma',), per=None):
    M = main.L if isinstance(main, Prog) else main
    S = side.L if isinstance(side, Prog) else side
    end = len(M) if end is None else end
    anchors = [k for k in range(start, end) if M[k].kind in after_kinds]
    out = []
    n = len(anchors); si = 0; cnt = 0
    if n == 0:
        return list(M) + list(S)
    for k, ins in enumerate(M):
        out.append(ins)
        if start <= k < end and ins.kind in after_kinds:
            cnt += 1
            target = (len(S) * cnt + n - 1) // n if per is None else min(len(S), per * cnt)
            while si < target or (si < len(S) and S[si].kind in ('waitvm', 'waitlgkm') and si < target + 1 and False):
                out.append(S[si]); si += 1
    out.extend(S[si:])
    return out

def resolve_waits(L):
    out = []
    vmq = []
    lgq = []
    seen = set()
    for ins in L:
        if ins.kind in ('vmem', 'ds') and ins.tok is not None: seen.add(id(ins.tok))
        if ins.kind in ('waitvm', 'waitlgkm'):
            for t in (ins.tok if isinstance(ins.tok, (list, tuple)) else [ins.tok]):
                assert id(t) in seen, f'wait on a token not yet issued: {t.name}'
        if ins.nomodel:
            out.append(ins)
        elif ins.kind == 'vmem':
            if not (ins.op.startswith('buffer_inv')):
                vmq.append(ins.tok)
            out.append(ins)
        elif ins.kind == 'ds':
            lgq.append(ins.tok); out.append(ins)
        elif ins.kind == 'smem':
            lgq.append('SMEM'); lgq.append('SMEM'); out.append(ins)
        elif ins.kind == 'waitvm':
            toks = ins.tok if isinstance(ins.tok, (list, tuple)) else [ins.tok]
            idx = -1
            for t in toks:
                for k in range(len(vmq) - 1, -1, -1):
                    if vmq[k] is t: idx = max(idx, k); break
            if idx < 0: continue
            n = len(vmq) - 1 - idx
            n = min(n, 63)
            out.append(Ins(f's_waitcnt vmcnt({n})'))
            vmq = vmq[len(vmq) - n:] if n > 0 else []
        elif ins.kind == 'waitlgkm':
            toks = ins.tok if isinstance(ins.tok, (list, tuple)) else [ins.tok]
            idx = -1
            for t in toks:
                for k in range(len(lgq) - 1, -1, -1):
                    if lgq[k] is t: idx = max(idx, k); break
            if idx < 0: continue
            n = len(lgq) - 1 - idx
            if 'SMEM' in lgq: n = 0
            n = min(n, 15)
            out.append(Ins(f's_waitcnt lgkmcnt({n})'))
            lgq = lgq[len(lgq) - n:] if n > 0 else []
        elif ins.kind == 'drainvm':
            out.append(Ins('s_waitcnt vmcnt(0)')); vmq = []
        elif ins.kind == 'drainlgkm':
            out.append(Ins('s_waitcnt lgkmcnt(0)')); lgq = []
        elif ins.kind == 'wait':
            m = re.search(r'vmcnt\((\d+)\)', ins.text)
            if m:
                n = int(m.group(1)); vmq = vmq[len(vmq) - n:] if 0 < n < len(vmq) else ([] if n == 0 else vmq)
            m = re.search(r'lgkmcnt\((\d+)\)', ins.text)
            if m:
                n = int(m.group(1)); lgq = lgq[len(lgq) - n:] if 0 < n < len(lgq) else ([] if n == 0 else lgq)
            out.append(ins)
        else:
            out.append(ins)
    return out

def _states(ins):
    if ins.kind == 'nop':
        return int(ins.text.split()[1], 0) + 1
    if ins.kind in ('label', 'raw'): return 0
    return 1

def pad_hazards(L, verbose=False):
    out = []
    hist = []
    npad = 0
    VALU = ('valu', 'trans', 'readlane', 'permlane')
    for ins in L:
        if ins.kind in ('label', 'raw'):
            out.append(ins); continue
        need = 0
        sv = set(ins.src); dv = set(ins.dst)
        for p, d in hist:
            req = 0
            pd = set(p.dst)
            if p.kind in VALU:
                vw = {r for r in pd if r[0] in 'va'}
                sw = {r for r in pd if r[0] == 's'}
                if ins.kind == 'mfma' and vw & sv: req = max(req, 2)
                if ins.dpp and vw & sv: req = max(req, 2)
                if ins.kind == 'permlane' and vw & sv: req = max(req, 2)
                if ins.kind == 'readlane' and vw & sv: req = max(req, 1)
                if p.kind == 'trans' and ins.kind in ('valu', 'permlane', 'readlane', 'mfma') and vw & sv: req = max(req, 1)
                if p.kind == 'trans' and ins.kind in ('ds', 'vmem') and vw & sv: req = max(req, 1)
                if p.op.startswith('v_dot'):
                    if ins.op == p.op:
                        ops_ab = set(ins.src[:-len(ins.dst)]) if ins.dst else set(ins.src)
                        if vw & ops_ab: req = max(req, 3)
                    elif vw & (sv | dv): req = max(req, 3)
                if sw & sv:
                    if ins.kind in ('valu', 'trans', 'permlane'): req = max(req, 2)
                    if ins.kind == 'readlane': req = max(req, 4)
                    if ins.kind == 'vmem': req = max(req, 5)
                    if ins.kind in ('salu', 'branch', 'smem'): req = max(req, 3)
                if sw and ins.kind == 'branch' and ('vcc' in ins.text) and (('s', 106) in sw): req = max(req, 5)
                if (('s', 126) in sw) and ins.dpp: req = max(req, 5)
            elif p.kind == 'mfma':
                D = pd
                n8 = p.passes == 8
                if ins.kind == 'mfma':
                    if D & set(ins.srcAB): req = max(req, 12 if n8 else 8)
                    c = set(ins.srcC)
                    if D & c:
                        if not (c == D and ins.passes == p.passes): req = max(req, 10 if n8 else 6)
                    if (D & dv) and not (c == D): req = max(req, 10 if n8 else 6)
                elif ins.kind in VALU:
                    if D & (sv | dv): req = max(req, 12 if n8 else 8)
                    if set(p.srcC) & dv: req = max(req, 7 if n8 else 3)
                elif ins.kind in ('ds', 'vmem'):
                    if D & (sv | dv): req = max(req, 12 if n8 else 8)
            elif p.kind == 'salu':
                if ('s', 124) in pd and ins.lds_dma: req = max(req, 1)
                if (('s', 126) in pd or ('s', 127) in pd) and ins.dpp: req = max(req, 1)
            elif p.kind == 'vmem' and p.wide_store:
                data = {r for r in p.src if r[0] in 'va'}
                if ins.kind in VALU and data & dv: req = max(req, 2)
            if req > d: need = max(need, req - d)
        if need > 0:
            npad += 1
            k = need
            while k > 0:
                n = min(k, 16)
                nop = Ins(f's_nop {n-1}')
                out.append(nop); k -= n
            for h in hist: h[1] += need
        out.append(ins)
        st = _states(ins)
        for h in hist: h[1] += st
        hist = [h for h in hist if h[1] < 24]
        if ins.kind in VALU or ins.kind in ('mfma', 'salu') or (ins.kind == 'vmem' and ins.wide_store):
            hist.append([ins, 0])
    if verbose: print('hazard pads inserted:', npad)
    return out

def finalize(prog, verbose=False):
    L = resolve_waits(prog.L if isinstance(prog, Prog) else prog)
    L = pad_hazards(L, verbose)
    lines = []
    for ins in L:
        if ins.kind == 'label': lines.append(ins.text)
        else: lines.append('    ' + ins.text)
    return '\n'.join(lines)


def units(L):
    out = []; k = 0
    while k < len(L):
        u = [L[k]]
        if L[k].grp is not None:
            g = L[k].grp; k += 1
            while k < len(L) and L[k].grp is g: u.append(L[k]); k += 1
        else:
            k += 1
        out.append(u)
    res = []; pend = []
    for u in out:
        if len(u) == 1 and u[0].kind in ('raw', 'waitvm', 'waitlgkm') and u[0].grp is None:
            pend += u
        else:
            res.append(pend + u); pend = []
    if pend: res.append(pend)
    return res

class Weaver:
    def __init__(self, steps):
        self.steps = steps
        self.fills = [[] for _ in steps]
    def fill(self, prog, a, b, by_units=False):
        U = units(prog.L if isinstance(prog, Prog) else prog)
        n = len(U); w = b - a
        assert 0 <= a < b <= len(self.steps), (a, b, len(self.steps))
        cost = [sum(1 for i in u if i.kind not in ('raw', 'waitvm', 'waitlgkm')) for u in U]
        if by_units: cost = [1 if any(i.kind == 'vmem' for i in u) else 0 for u in U]
        tot = sum(cost); acc = 0
        for u, c in zip(U, cost):
            k = a + min(w - 1, (acc * w) // max(tot, 1))
            self.fills[k].append(u); acc += c
    def at(self, prog, k, front=False):
        L = prog.L if isinstance(prog, Prog) else prog
        if front: self.steps[k].L = list(L) + self.steps[k].L
        else: self.steps[k].L = self.steps[k].L + list(L)
    def emit(self, p):
        def ucost(u):
            c = 0
            for i in u:
                if i.kind in ('raw', 'waitvm', 'waitlgkm', 'label'): continue
                c += 2 if i.kind == 'trans' else (0.5 if i.kind == 'salu' else 1)
            return c
        for st, F in zip(self.steps, self.fills):
            M = st.L
            anchors = [k for k, i in enumerate(M) if i.kind == 'mfma']
            if not anchors or not F:
                p.extend(M)
                for u in F: p.extend(u)
                continue
            gaps = []
            for gi, k in enumerate(anchors):
                e = k + 1
                while e < len(M) and M[e].kind != 'mfma': e += 1
                used = sum(1 for i in M[k+1:e] if i.kind in ('ds', 'valu', 'vmem', 'trans'))
                cap = 6 if M[k].passes == 8 else 2
                gaps.append((e, max(0.5, cap - used)))
            tot = sum(ucost(u) for u in F); capsum = sum(c for _, c in gaps)
            fi = 0; acc = 0.0; lim = 0.0; gi = 0
            k = 0
            for gi, (e, cap) in enumerate(gaps):
                while k < e:
                    p.L.append(M[k]); k += 1
                lim += tot * cap / capsum
                while fi < len(F) and (acc + ucost(F[fi]) / 2 <= lim or gi == len(gaps) - 1):
                    p.extend(F[fi]); acc += ucost(F[fi]); fi += 1
            while k < len(M):
                p.L.append(M[k]); k += 1
```

```python
import sys, math, struct
sys.path.insert(0, 'dev')
from asmfw import *

NAME = "recurrent_scan__linear_attn_block__mixer_gmlp__prompt"
def f2u(x): return struct.unpack('<I', struct.pack('<f', x))[0]

WS_EPOCH = 0
WS_ZF    = 0x1000
WS_F2    = 0x2000
WS_F3    = 0xA000
WS_F4    = 0x12000
WS_FK    = 0x30000
WS_KV    = 0x20000
WS_ZA    = 0x28000
WS_S1    = 0x40000
WS_Z2N   = 0x100000
WS_ACT   = 0x500000
ACT_T    = 88 * 512
ACT_I    = 4 * ACT_T
WS_SIZE  = 0xB00000
WS_DUMP  = 0x2000000
OOB      = 0x7f000000
SL_X0, SL_X1, SL_C, SL_D, SL_E = 0, 32768, 65536, 98304, 131072
def slot(s): return [SL_C, SL_D, SL_E][s] if s < 3 else [SL_X0, SL_C, SL_D, SL_E][(s - 3) % 4]
LDS_ZT   = SL_X1
LDS_AB   = SL_X1 + 18432
LDS_KVS  = SL_X1 + 19456
LDS_TOTAL = 163840
SRD_X, SRD_QKV, SRD_WIN, SRD_WSP, SRD_WO, SRD_WOUT, SRD_OUT, SRD_WS, SRD_BSP = 8, 12, 16, 20, 24, 28, 32, 36, 40
S_I, S_J, S_W, S_TAG = 44, 45, 46, 47
S_GC1, S_L2E, S_EPS6 = 56, 57, 58
S_MASK16 = 60
S_RH, S_CH = 62, 63
S_H3 = 95
S_EP = 75
V_EP = 56
S_R1, S_R2 = 4, 5
S_KZ, S_KQ, S_W4K, S_Z2B, S_SPB = 64, 68, 72, 73, 74
S_Z2, S_A3, S_OUT, S_ZC = 86, 87, 88, 89
S_D0, S_D1, S_D2 = 92, 93, 94
S_B0 = 96
def srd(n): return f's[{n}:{n+3}]'
V_LANE = 1
V_ZDMA = 2
V_SDMA = 2
V_KDMA = 9
V_W3DMA = 9
V_ZRD, V_KRD = 13, 14
V_RD   = 15
V_GC0  = 17
V_Z2OFF = 18
V_OUTOFF = 19
V_WF   = 20
V_SPRD = 20
V_SPF  = 28
V_W3RD = 20
V_W3F  = 128
V_PQ   = 52
V_BSP  = 60
V_XRD  = 128
V_KVH  = 144
V_ACC0, V_ACC1, V_ACC2 = 64, 96, 128
V_PK   = 160
V_ACCQ = 176
V_Z1P  = 192
V_TMP  = 208
V_GCP  = 240
V_TB   = 246
V_KVH  = 6
KVH    = [6, 7, 8, 62, 63, 236, 237, 244, 245]
V_S3, V_B3, V_XR = 64, 80, 96
def vr(n, k=1): return f'v{n}' if k == 1 else f'v[{n}:{n+k-1}]'
def ar(n, k=1): return f'a{n}' if k == 1 else f'a[{n}:{n+k-1}]'
M32 = 'v_mfma_f32_32x32x16_bf16'
M16 = 'v_mfma_f32_16x16x32_bf16'

class Cfg:
    stop = None
    stamps = False
    zdepth = 24
    bst = 1
    nodma = 0
    noside = 0
    nobar = 0
    nosp = 0
    noz = 0
    zsc1 = 1
    noside2 = 0
    dfrac = 85
    touch = 0
    codebytes = 36000
    z1pk = 1
    s2bar = 11
    s3bar = 20
    kchk = 54
    fkbar = 16
    z2a_end = 46
    z2b_bar = 6
    ab_bar = 9
    s4step = 11
    touch2 = 0
    sent = 1
    mall = 1
    rot = 7
    p0pre = 0
    p0mid = 4
    xst = 0
    sentpos = 0
    sentsc = 1
    hinit = 6
    z1end = 115

STAMPS = []
def stamp(p, cfg, name, real=False):
    if not cfg.stamps: return
    k = len(STAMPS); STAMPS.append(name)
    p.begin_bundle()
    p.e('s_memrealtime s[90:91]' if real else 's_memtime s[90:91]')
    p.e('s_waitcnt lgkmcnt(0)')
    p.e(f'v_writelane_b32 v255, s90, {k}')
    p.end_bundle()
def stamp_flush(p, cfg):
    if not cfg.stamps: return
    p.e(f's_lshl_b32 s48, s2, 2\ns_add_u32 s48, s48, s{S_W}\ns_lshl_b32 s48, s48, 8\ns_add_u32 s48, s48, {WS_DUMP}')
    p.e(f'v_lshlrev_b32 v254, 2, v{V_LANE}')
    p.vm(f'buffer_store_dword v255, v254, {srd(SRD_WS)}, s48 offen')
    p.drain_vm()

uid = [0]
def label(prefix):
    uid[0] += 1
    return f'L_{prefix}_{uid[0]}'

STAGES = ([('Z', 'z2', k) for k in range(4)] + [('KV', 'kv', k) for k in range(4)] + [('Z', 'z1', k) for k in range(4)] +
          [('Q', 'q', k) for k in range(2)] + [('SP', 'sp', k) for k in range(8)] + [('W3', 'wo', k) for k in range(2)] +
          [('W3', 'wout', k) for k in range(4)])
NP1 = 14

def dma_stage(s, toks):
    p = Prog()
    sl = slot(s); typ, blk, k = STAGES[s]
    tl = toks.setdefault(s, [])
    D0, D1, D2 = S_D0, S_D1, S_D2
    def ld(v, sr, so, off): tl.append(p.vm(f'buffer_load_dwordx4 v{v}, {srd(sr)}, s{so} offen offset:{off} lds'))
    if typ == 'SP':
        p.begin_bundle()
        p.e(f's_xor_b32 s{D0}, s{S_R2}, {k}\ns_lshl_b32 s{D0}, s{D0}, 9\ns_add_u32 s{D0}, s{D0}, s{S_SPB}')
        p.e(f's_add_u32 s{D1}, s{D0}, {32*4096}')
        p.e(f's_lshl_b32 s{D2}, s{S_W4K}, 1\ns_add_u32 m0, s{D2}, {sl}')
        ld(V_SDMA, SRD_WSP, D0, 0); p.end_bundle()
        for g8 in range(1, 8):
            p.begin_bundle()
            if g8 == 4: p.e('s_add_u32 m0, m0, 4096')
            ld(V_SDMA + (g8 & 3), SRD_WSP, D0 if g8 < 4 else D1, (g8 & 3)*1024); p.end_bundle()
    elif typ == 'W3':
        sr = SRD_WO if blk == 'wo' else SRD_WOUT
        nrows = 512 if blk == 'wo' else 896
        for half in range(2):
            row0 = 256*k + 128*half
            if row0 >= nrows: continue
            p.begin_bundle()
            p.e(f's_lshl_b32 s{D0}, s{S_W}, 15\ns_lshl_b32 s{D2}, s{S_J}, 7\ns_add_u32 s{D0}, s{D0}, s{D2}\ns_add_u32 s{D0}, s{D0}, {row0*1024}')
            p.e(f's_lshl_b32 s{D2}, s{S_W}, 12\ns_add_u32 m0, s{D2}, {sl + 16384*half}')
            ld(V_W3DMA, sr, D0, 0); p.end_bundle()
            for u in range(1, 4): ld(V_W3DMA + u, sr, D0, u*1024)
    elif typ == 'Z':
        col = 1792 if blk == 'z2' else 0
        for part in range(2):
            p.begin_bundle()
            p.e(f's_add_u32 s{D0}, s{S_KZ+k}, {col + 128*part}')
            p.e(f's_add_u32 m0, s{S_W4K}, {sl + 16384*part}')
            ld(V_ZDMA, SRD_WIN, D0, 0); p.end_bundle()
            for u in range(1, 4): ld(V_ZDMA + u, SRD_WIN, D0, u*1024)
    else:
        parts = [(k, 1024, 0), (k, 2048, 16384)] if typ == 'KV' else [(2*k, 0, 0), (2*k + 1, 0, 16384)]
        for gq, col, lo in parts:
            p.begin_bundle()
            p.e(f's_add_u32 s{D0}, s{S_KQ+gq}, {col}')
            p.e(f's_add_u32 m0, s{S_W4K}, {sl + lo}')
            ld(V_KDMA, SRD_QKV, D0, 0); p.end_bundle()
            for u in range(1, 4): ld(V_KDMA + u, SRD_QKV, D0, u*1024)
    return p

def gelu(p, r0, n, tmp, g=4):
    for c in range(0, n, g):
        xs = [r0+c+k for k in range(g)]
        t = [tmp+k for k in range(g)]
        for k in range(g): p.e(f'v_mul_f32 v{t[k]}, v{xs[k]}, v{xs[k]}')
        for k in range(g): p.e(f'v_fma_f32 v{t[k]}, v{t[k]}, s{S_GC1}, v{V_GC0}')
        for k in range(g): p.e(f'v_mul_f32 v{t[k]}, v{xs[k]}, v{t[k]}')
        for k in range(g): p.e(f'v_exp_f32 v{t[k]}, v{t[k]}')
        for k in range(g): p.e(f'v_add_f32 v{t[k]}, 1.0, v{t[k]}')
        for k in range(g): p.e(f'v_rcp_f32 v{t[k]}, v{t[k]}')
        for k in range(g): p.e(f'v_mul_f32 v{xs[k]}, v{xs[k]}, v{t[k]}')
def phi(p, r0, n, tmp, g=4):
    for c in range(0, n, g):
        xs = [r0+c+k for k in range(g)]
        t = [tmp+k for k in range(g)]
        for k in range(g): p.e(f'v_mul_f32 v{t[k]}, s{S_L2E}, v{xs[k]}')
        for k in range(g): p.e(f'v_min_f32 v{t[k]}, 0, v{t[k]}')
        for k in range(g): p.e(f'v_exp_f32 v{t[k]}, v{t[k]}')
        for k in range(g): p.e(f'v_max_f32 v{xs[k]}, 0, v{xs[k]}')
        for k in range(g): p.e(f'v_add_f32 v{xs[k]}, s{S_EPS6}, v{xs[k]}')
        for k in range(g): p.e(f'v_add_f32 v{xs[k]}, v{xs[k]}, v{t[k]}')
def gelu_pk(p, r0, n, tmp):
    for c in range(0, n, 8):
        xs = [r0+c+2*k for k in range(4)]; t = [tmp+2*k for k in range(4)]
        for k in range(4): p.e(f'v_pk_mul_f32 {vr(t[k],2)}, {vr(xs[k],2)}, {vr(xs[k],2)}')
        for k in range(4): p.e(f'v_pk_fma_f32 {vr(t[k],2)}, {vr(t[k],2)}, {vr(V_GCP,2)}, {vr(V_GCP,2)} op_sel:[0,0,1] op_sel_hi:[1,0,1]')
        for k in range(4): p.e(f'v_pk_mul_f32 {vr(t[k],2)}, {vr(xs[k],2)}, {vr(t[k],2)}')
        for k in range(8): p.e(f'v_exp_f32 v{tmp+k}, v{tmp+k}')
        for k in range(4): p.e(f'v_pk_add_f32 {vr(t[k],2)}, {vr(t[k],2)}, {vr(V_GCP+2,2)}')
        for k in range(8): p.e(f'v_rcp_f32 v{tmp+k}, v{tmp+k}')
        for k in range(4): p.e(f'v_pk_mul_f32 {vr(xs[k],2)}, {vr(xs[k],2)}, {vr(t[k],2)}')
def pack(p, dst, src, n):
    for k in range(0, n, 2): p.e(f'v_cvt_pk_bf16_f32 v{dst + k//2}, v{src+k}, v{src+k+1}')
def pi_rho(p, dst, src, t):
    p.e(f'v_and_b32 v{dst}, 0x13, v{src}\nv_bfe_u32 v{t}, v{src}, 2, 1\nv_lshl_or_b32 v{dst}, v{t}, 3, v{dst}\nv_bfe_u32 v{t}, v{src}, 3, 1\nv_lshl_or_b32 v{dst}, v{t}, 2, v{dst}')
def allreduce_rows(p, vals, tmp):
    for swap in ('v_permlane16_swap_b32', 'v_permlane32_swap_b32'):
        for k, v in enumerate(vals): p.e(f'v_mov_b32 v{tmp+k}, v{v}')
        for k, v in enumerate(vals): p.e(f'{swap} v{v}, v{tmp+k}')
        for k, v in enumerate(vals): p.e(f'v_add_f32 v{v}, v{v}, v{tmp+k}')

def flag_store(p, soff, vt):
    p.begin_bundle()
    p.e(f'v_mov_b32 v{vt}, s{S_TAG}\nv_mov_b32 v{vt+1}, 0')
    p.e('s_mov_b64 exec, 1')
    t = p.vm(f'buffer_store_dword v{vt}, v{vt+1}, {srd(SRD_WS)}, s{soff} offen sc1')
    p.e('s_mov_b64 exec, -1')
    p.end_bundle()
    return t

def flag_load(p, vdst, voff, soff):
    return p.vm(f'buffer_load_dword v{vdst}, v{voff}, {srd(SRD_WS)}, s{soff} offen sc1')

def flag_check(p, tok, vdst, voff, soff, name, cnt):
    l0, l1 = label(name), label(name + 'ok')
    p.wait_vm(tok)
    p.begin_bundle()
    p.e(f'v_cmp_ne_u32 vcc, s{S_TAG}, v{vdst}')
    p.e(f's_mov_b32 s{cnt}, 0')
    p.e(f's_cbranch_vccz {l1}')
    p.e(f'{l0}:')
    p.e_nomodel(f's_sleep 2')
    p.vm_nomodel(f'buffer_load_dword v{vdst}, v{voff}, {srd(SRD_WS)}, s{soff} offen sc1')
    p.e_nomodel('s_waitcnt vmcnt(0)')
    p.e(f'v_cmp_ne_u32 vcc, s{S_TAG}, v{vdst}')
    p.e(f's_add_u32 s{cnt}, s{cnt}, 1')
    p.e(f's_cbranch_vccz {l1}')
    p.e(f's_cmp_lt_u32 s{cnt}, 0x40000')
    p.e(f's_cbranch_scc1 {l0}')
    p.e(f'{l1}:')
    p.end_bundle()

def prologue(p, cfg):
    p.e('s_load_dwordx16 s[64:79], s[0:1], 0\ns_load_dwordx4 s[80:83], s[0:1], 64\ns_load_dwordx2 s[84:85], s[0:1], 80')
    p.e(f'v_and_b32 v{V_LANE}, 63, v0\nv_lshrrev_b32 v2, 6, v0')
    p.e(f'v_readfirstlane_b32 s{S_W}, v2')
    p.e(f's_and_b32 s48, s2, 7\ns_lshr_b32 s49, s2, 3')
    p.e(f's_lshr_b32 s{S_I}, s48, 1\ns_lshl_b32 s{S_I}, s{S_I}, 3\ns_and_b32 s50, s49, 7\ns_add_u32 s{S_I}, s{S_I}, s50')
    p.e(f's_and_b32 s{S_J}, s48, 1\ns_lshl_b32 s{S_J}, s{S_J}, 2\ns_lshr_b32 s50, s49, 3\ns_add_u32 s{S_J}, s{S_J}, s50')
    p.e(f's_and_b32 s{S_RH}, s{S_W}, 1\ns_lshr_b32 s{S_CH}, s{S_W}, 1')
    p.e(f's_lshl_b32 s{S_ZC}, s{S_J}, 8\ns_cmp_eq_u32 s{S_J}, 7\ns_cselect_b32 s{S_ZC}, {OOB:#x}, s{S_ZC}')
    p.e(f's_mov_b32 s{S_GC1}, {f2u(-0.1029432395800235):#x}\ns_mov_b32 s{S_L2E}, {f2u(math.log2(math.e)):#x}\ns_mov_b32 s{S_EPS6}, {f2u(1e-6):#x}')
    p.e(f's_mov_b32 s{S_MASK16}, 0xffff0000\ns_mov_b32 s{S_MASK16+1}, 0xffff0000')
    p.e(f'v_mov_b32 v{V_GC0}, {f2u(-2.302208198144325):#x}')
    T = V_TMP
    p.e(f'v_lshrrev_b32 v{T+1}, 3, v{V_LANE}\nv_and_b32 v{T+2}, 7, v{V_LANE}')
    p.e(f'v_lshlrev_b32 v{T}, 10, v{T+1}\nv_lshl_add_u32 v{T}, v{T+2}, 4, v{T}')
    rot = cfg.rot
    p.e(f's_and_b32 s{S_R1}, s{S_I}, {3 if rot & 1 else 0}')
    p.e(f's_and_b32 s{S_R2}, s{S_J}, 3\ns_lshl_b32 s{S_R2}, s{S_R2}, 1\ns_and_b32 s6, s{S_I}, 7\ns_xor_b32 s{S_R2}, s{S_R2}, s6\ns_and_b32 s{S_R2}, s{S_R2}, {7 if rot & 2 else 0}')
    p.e(f's_and_b32 s6, s{S_J}, {3 if rot & 4 else 0}')
    p.e(f's_lshl_b32 s48, s{S_I}, 16\ns_lshl_b32 s49, s{S_W}, 14\ns_add_u32 s7, s48, s49')
    for c in range(4):
        p.e(f's_xor_b32 s{48+c}, s6, {c}\ns_lshl_b32 s{48+c}, s{48+c}, 8\ns_add_u32 s{48+c}, s{48+c}, s7\ns_add_u32 s{52+c}, s{48+c}, 8192')
    p.drain_lgkm()
    stamp(p, cfg, 'karg')
    wsz = WS_SIZE if not (cfg.stop or cfg.stamps) else 0x4000000
    def mk(s, ptr, size): p.e(f's_mov_b32 s{s}, s{ptr}\ns_and_b32 s{s+1}, s{ptr+1}, 0xffff\ns_mov_b32 s{s+2}, {size:#x}\ns_mov_b32 s{s+3}, 0x20000')
    mk(SRD_X, 64, 2048*1024)
    XB = 144
    xt = []
    for hh in range(2):
        for seg in range(8):
            r = XB + (hh*8+seg)*4
            xt.append(p.vm(f'buffer_load_dwordx4 {vr(r,4)}, v{T}, {srd(SRD_X)}, s{48 + 4*hh + (seg >> 1)} offen offset:{(seg & 1)*128}'))
    for s, ptr, size in ((SRD_WIN, 72, 512*3584), (SRD_WS, 84, wsz), (SRD_QKV, 66, 512*3072), (SRD_WO, 68, 512*1024),
                         (SRD_WSP, 74, 2048*4096), (SRD_BSP, 76, 4096), (SRD_WOUT, 78, 896*1024), (SRD_OUT, 80, 2048*1024)):
        mk(s, ptr, size)
    p.e(f's_lshl_b32 s50, s{S_W}, 14\nv_xor_b32 v{T+2}, v{T+2}, v{T+1}\nv_lshlrev_b32 v{T+3}, 10, v{T+1}\nv_lshl_add_u32 v{T+3}, v{T+2}, 4, v{T+3}\nv_add_u32 v{T+3}, s50, v{T+3}')
    for c in range(4):
        p.e(f's_xor_b32 s51, s6, {c}\ns_lshl_b32 s51, s51, 8\nv_add_u32 v{104+c}, s51, v{T+3}')
    for gq in range(4):
        p.e(f's_xor_b32 s51, s{S_R1}, {gq}\ns_lshl_b32 s51, s51, 7\ns_lshl_b32 s52, s{S_W}, 5\ns_add_u32 s51, s51, s52')
        p.e(f's_mul_i32 s{S_KZ+gq}, s51, 3584\ns_add_u32 s{S_KZ+gq}, s{S_KZ+gq}, s{S_ZC}')
        p.e(f's_mul_i32 s{S_KQ+gq}, s51, 3072\ns_lshl_b32 s52, s{S_J}, 7\ns_add_u32 s{S_KQ+gq}, s{S_KQ+gq}, s52')
    p.e(f's_lshl_b32 s{S_W4K}, s{S_W}, 12')
    p.e(f's_lshl_b32 s{S_SPB}, s{S_I}, 18\ns_lshl_b32 s51, s{S_W}, 7\ns_add_u32 s{S_SPB}, s{S_SPB}, s51')
    return xt, XB, T+3

def mall_prefetch(p, cfg):
    lab = label('mp'); L = V_LANE; A = 102
    p.begin_bundle()
    p.e(f's_cmp_lg_u32 s{S_J}, 7\ns_cbranch_scc1 {lab}')
    p.e(f'v_lshrrev_b32 v{A}, 5, v{L}\nv_lshlrev_b32 v{A}, 12, v{A}\nv_and_b32 v{A+1}, 31, v{L}\nv_lshl_add_u32 v{A}, v{A+1}, 7, v{A}')
    p.e(f's_lshl_b32 s52, s{S_I}, 18\ns_lshl_b32 s53, s{S_W}, 16\ns_add_u32 s52, s52, s53')
    for k in range(8):
        p.vm_nomodel(f'buffer_load_dword v0, v{A}, {srd(SRD_WSP)}, s52 offen')
        p.e(f's_add_u32 s52, s52, 8192')
    p.e(f'v_lshrrev_b32 v{A}, 3, v{L}\nv_lshlrev_b32 v{A}, 10, v{A}\nv_and_b32 v{A+1}, 7, v{L}\nv_lshl_add_u32 v{A}, v{A+1}, 7, v{A}')
    p.e(f's_lshl_b32 s52, s{S_I}, 2\ns_add_u32 s52, s52, s{S_W}\ns_lshl_b32 s52, s52, 13')
    p.vm_nomodel(f'buffer_load_dword v0, v{A}, {srd(SRD_WOUT)}, s52 offen')
    p.vm_nomodel(f'buffer_load_dword v0, v{A}, {srd(SRD_WO)}, s52 offen')
    p.e(f'{lab}:')
    p.end_bundle()

def z_addr_setup(p, T):
    L = V_LANE; t0, t1, t2 = T, T+1, T+2
    p.e(f'v_lshrrev_b32 v{t0}, 3, v{L}\nv_and_b32 v{t1}, 7, v{L}')
    p.e(f'v_bfe_u32 v{t2}, v{L}, 4, 1\nv_lshlrev_b32 v{t2}, 2, v{t2}\nv_xor_b32 v{t1}, v{t1}, v{t2}')
    p.e(f'v_mul_u32_u24 v{t2}, 3584, v{t0}\nv_lshl_add_u32 v{V_ZDMA}, v{t1}, 4, v{t2}')
    for u in range(1, 4): p.e(f'v_add_u32 v{V_ZDMA+u}, {u*8*3584 - u*1024}, v{V_ZDMA}')
    p.e(f'v_mul_u32_u24 v{t2}, 3072, v{t0}\nv_lshl_add_u32 v{V_KDMA}, v{t1}, 4, v{t2}')
    for u in range(1, 4): p.e(f'v_add_u32 v{V_KDMA+u}, {u*8*3072 - u*1024}, v{V_KDMA}')

def k_addr_setup(p, T):
    L = V_LANE; t0, t1, t2, t3, t4 = T, T+1, T+2, T+3, T+4
    p.e(f'v_lshrrev_b32 v{t0}, 5, v{L}\nv_bfe_u32 v{t1}, v{L}, 2, 2')
    p.e(f'v_bfe_u32 v{t3}, v{L}, 4, 1\nv_and_b32 v{t4}, 3, v{L}')
    p.e(f'v_lshl_add_u32 v{t2}, v{t0}, 3, v{t1}\nv_lshlrev_b32 v{t2}, 7, v{t2}')
    p.e(f'v_lshl_add_u32 v{t2}, v{t3}, 5, v{t2}\nv_lshl_add_u32 v{t2}, v{t4}, 3, v{t2}')
    p.e(f'v_lshrrev_b32 v{t1}, 1, v{t1}')
    p.e(f'v_xor_b32 v{t3}, s{S_CH}, v{t1}\nv_lshl_add_u32 v{V_KRD}, v{t3}, 6, v{t2}')
    p.e(f'v_xor_b32 v{t3}, s{S_RH}, v{t1}\nv_lshl_add_u32 v{V_ZRD}, v{t3}, 6, v{t2}\ns_lshl_b32 s52, s{S_CH}, 14\nv_add_u32 v{V_ZRD}, s52, v{V_ZRD}')
    pi_rho(p, t0, L, t1)
    p.e(f'v_and_b32 v{t1}, 15, v{t0}\nv_lshrrev_b32 v{t2}, 5, v{L}\nv_xor_b32 v{t1}, v{t1}, v{t2}\nv_lshlrev_b32 v{t0}, 10, v{t0}')
    p.e(f's_lshl_b32 s52, s{S_RH}, 15\ns_lshl_b32 s53, s{S_R1}, 8\ns_add_u32 s52, s52, s53\ns_xor_b32 s53, s52, 32768')
    for beta in range(8):
        p.e(f'v_xor_b32 v{t2}, {2*beta}, v{t1}\nv_lshl_add_u32 v{t2}, v{t2}, 4, v{t0}')
        p.e(f'v_add_u32 v{V_XRD+beta}, s52, v{t2}\nv_add_u32 v{V_XRD+8+beta}, s53, v{t2}')

def epoch_zero(p, T):
    p.e(f'v_mov_b32 v{T}, 0')
    et = p.vm(f'buffer_load_dword v{T+1}, v{T}, {srd(SRD_WS)}, 0 offen sc1')
    for k in range(4): p.e(f'v_mov_b32 v{T+2+k}, 0')
    p.e(f's_lshl_b32 s52, s{S_J}, 12\ns_lshl_b32 s53, s{S_W}, 10\ns_add_u32 s52, s52, s53\ns_add_u32 s52, s52, {WS_KV}')
    p.e(f's_cmp_eq_u32 s{S_I}, 0\ns_cselect_b32 s52, s52, {OOB:#x}')
    p.e(f'v_lshlrev_b32 v{T+6}, 4, v{V_LANE}')
    z1 = p.vm(f'buffer_store_dwordx4 {vr(T+2,4)}, v{T+6}, {srd(SRD_WS)}, s52 offen sc1')
    p.e(f's_lshl_b32 s53, s{S_J}, 8\ns_add_u32 s53, s53, {WS_ZA}')
    p.e(f's_or_b32 s54, s{S_I}, s{S_W}\ns_cmp_eq_u32 s54, 0\ns_cselect_b32 s53, s53, {OOB:#x}')
    p.begin_bundle()
    p.e('s_mov_b64 exec, 0xffff')
    z2 = p.vm(f'buffer_store_dwordx4 {vr(T+2,4)}, v{T+6}, {srd(SRD_WS)}, s53 offen sc1')
    p.e('s_mov_b64 exec, -1')
    p.end_bundle()
    return et, [z1, z2]

def epoch_finish(p, et, zt, T):
    p.wait_vm([et] + zt)
    p.e(f'v_readfirstlane_b32 s{S_TAG}, v{T+1}')
    p.e(f's_mul_i32 s{S_TAG}, s{S_TAG}, 1664525\ns_add_u32 s{S_TAG}, s{S_TAG}, 1013904223')
    p.e(f's_lshl_b32 s52, s{S_J}, 9\ns_lshl_b32 s53, s{S_W}, 7\ns_add_u32 s52, s52, s53\ns_add_u32 s52, s52, {WS_ZF}')
    p.e(f's_cmp_eq_u32 s{S_I}, 0\ns_cselect_b32 s52, s52, {OOB:#x}')
    flag_store(p, 52, T)

def p0_stats(p, xt, XB, T):
    ones = T
    S = [T+2, T+3, T+4, T+5]; Q = [T+6, T+7, T+8, T+9]
    p.e(f'v_mov_b32 v{ones}, 0x3f803f80')
    for r in S + Q: p.e(f'v_mov_b32 v{r}, 0')
    for hh in range(2):
        for seg in range(8):
            p.wait_vm(xt[hh*8+seg])
            r = XB + (hh*8+seg)*4
            for d in range(4):
                c = hh*2 + (d & 1)
                p.e(f'v_dot2_f32_bf16 v{S[c]}, v{r+d}, v{ones}, v{S[c]}')
                p.e(f'v_dot2_f32_bf16 v{Q[c]}, v{r+d}, v{r+d}, v{Q[c]}')
    for hh in range(2):
        p.e(f'v_add_f32 v{S[2*hh]}, v{S[2*hh]}, v{S[2*hh+1]}\nv_add_f32 v{Q[2*hh]}, v{Q[2*hh]}, v{Q[2*hh+1]}')
    vals = [S[0], Q[0], S[2], Q[2]]
    for dpp in ('quad_perm:[1,0,3,2]', 'quad_perm:[2,3,0,1]', 'row_half_mirror'):
        for v in vals: p.e(f'v_add_f32_dpp v{v}, v{v}, v{v} {dpp} row_mask:0xf bank_mask:0xf')
    AB = [T+10, T+12]
    for hh in range(2):
        s_, q_, a = S[2*hh], Q[2*hh], AB[hh]
        p.e(f'v_mul_f32 v{s_}, {f2u(1/512):#x}, v{s_}\nv_mul_f32 v{q_}, {f2u(1/512):#x}, v{q_}')
    for hh in range(2):
        s_, q_, a = S[2*hh], Q[2*hh], AB[hh]
        p.e(f'v_fma_f32 v{q_}, -v{s_}, v{s_}, v{q_}')
    for hh in range(2):
        q_ = Q[2*hh]
        p.e(f'v_max_f32 v{q_}, 0, v{q_}\nv_add_f32 v{q_}, {f2u(1e-5):#x}, v{q_}')
    for hh in range(2): p.e(f'v_rsq_f32 v{AB[hh]}, v{Q[2*hh]}')
    for hh in range(2):
        s_, a = S[2*hh], AB[hh]
        p.e(f'v_mul_f32 v{a+1}, -v{s_}, v{a}')
    return AB

def p0_norm(p, XB, T, AB, vwb):
    T2 = [T+14, T+16, T+18, T+20]
    n = 0
    for hh in range(2):
        a = AB[hh]
        for seg in range(8):
            r = XB + (hh*8+seg)*4
            ts = [T2[d] for d in range(4)]
            for d in range(4): p.e(f'v_lshlrev_b32 v{ts[d]}, 16, v{r+d}\nv_and_b32 v{ts[d]+1}, 0xffff0000, v{r+d}')
            for d in range(4): p.e(f'v_pk_fma_f32 {vr(ts[d],2)}, {vr(ts[d],2)}, {vr(a,2)}, {vr(a,2)} op_sel:[0,0,1] op_sel_hi:[1,0,1]')
            for d in range(4): p.e(f'v_cvt_pk_bf16_f32 v{r+d}, v{ts[d]}, v{ts[d]+1}')
            p.ds(f'ds_write_b128 v{104 + (seg >> 1)}, {vr(r,4)} offset:{hh*8192 + ((seg & 1) ^ hh)*128}')

def touches(T):
    p = Prog(); L = V_LANE; A, D = T, T+1
    B = S_B0
    p.e(f's_lshr_b32 s{B}, s2, 3\ns_and_b32 s{B+1}, s2, 1\ns_lshl_b32 s{B+1}, s{B+1}, 2')
    p.e(f'v_lshrrev_b32 v{A}, 3, v{L}\nv_lshlrev_b32 v{A}, 12, v{A}\nv_and_b32 v{D}, 7, v{L}\nv_lshl_add_u32 v{A}, v{D}, 7, v{A}')
    p.e(f's_lshl_b32 s{B+2}, s{S_I}, 18\ns_lshl_b32 s{B+3}, s{S_W}, 16\ns_add_u32 s{B+2}, s{B+2}, s{B+3}\ns_lshr_b32 s{B+3}, s{B}, 3\ns_lshl_b32 s{B+3}, s{B+3}, 10\ns_add_u32 s{B+2}, s{B+2}, s{B+3}')
    sp = [f'buffer_load_dword v0, v{A}, {srd(SRD_WSP)}, s{B+2} offen', f's_add_u32 s{B+2}, s{B+2}, {8*4096}', f'buffer_load_dword v0, v{A}, {srd(SRD_WSP)}, s{B+2} offen']
    return p, sp

def touch_weights(T):
    p = Prog(); L = V_LANE; A, D = T, T+1
    B = S_B0
    p.e(f's_lshr_b32 s{B}, s2, 3\ns_and_b32 s{B+1}, s2, 1')
    p.e(f's_lshl_b32 s{B+2}, s{B}, 4\ns_lshl_b32 s{B+3}, s{S_W}, 2\ns_add_u32 s{B+2}, s{B+2}, s{B+3}')
    p.e(f'v_lshrrev_b32 v{A}, 4, v{L}\nv_mul_u32_u24 v{A}, 3584, v{A}\nv_and_b32 v{D}, 7, v{L}\nv_lshl_add_u32 v{A}, v{D}, 7, v{A}')
    p.e(f'v_bfe_u32 v{D}, v{L}, 3, 1\nv_mul_u32_u24 v{D}, 1792, v{D}\nv_add_u32 v{A}, v{A}, v{D}')
    p.e(f's_mul_i32 s{B+3}, s{B+2}, 3584\ns_lshl_b32 s{B+4}, s{B+1}, 10\ns_add_u32 s{B+3}, s{B+3}, s{B+4}')
    p.vm(f'buffer_load_dword v0, v{A}, {srd(SRD_WIN)}, s{B+3} offen')
    p.e(f'v_lshrrev_b32 v{A}, 4, v{L}\nv_mul_u32_u24 v{A}, 3072, v{A}\nv_and_b32 v{D}, 3, v{L}\nv_lshl_add_u32 v{A}, v{D}, 7, v{A}')
    p.e(f'v_bfe_u32 v{D}, v{L}, 2, 2\nv_min_u32 v{D}, 2, v{D}\nv_lshl_add_u32 v{A}, v{D}, 10, v{A}')
    p.e(f's_mul_i32 s{B+3}, s{B+2}, 3072\ns_lshl_b32 s{B+4}, s{B+1}, 9\ns_add_u32 s{B+3}, s{B+3}, s{B+4}')
    p.vm(f'buffer_load_dword v0, v{A}, {srd(SRD_QKV)}, s{B+3} offen')
    return p

def touch_w3(T):
    p = Prog(); L = V_LANE; A, D = T, T+1
    B = S_B0
    p.e(f's_lshr_b32 s{B}, s2, 3\ns_and_b32 s{B+1}, s2, 1\ns_lshl_b32 s{B}, s{B}, 2\ns_add_u32 s{B}, s{B}, s{S_W}\ns_lshl_b32 s{B}, s{B}, 14')
    p.e(f'v_lshrrev_b32 v{A}, 2, v{L}\nv_lshlrev_b32 v{A}, 10, v{A}\nv_and_b32 v{D}, 3, v{L}\nv_lshl_add_u32 v{A}, v{D}, 7, v{A}')
    p.e(f's_lshl_b32 s{B+1}, s{B+1}, 9\ns_add_u32 s{B}, s{B}, s{B+1}')
    p.vm(f'buffer_load_dword v0, v{A}, {srd(SRD_WOUT)}, s{B} offen')
    p.vm(f'buffer_load_dword v0, v{A}, {srd(SRD_WO)}, s{B} offen')
    return p

def code_touch(T, nbytes):
    p = Prog(); L = V_LANE
    n = (nbytes + 8191) // 8192
    lab = label('ct')
    p.begin_bundle()
    p.e(f's_lshr_b32 s{S_B0}, s2, 3\ns_lshl_b32 s{S_B0+1}, s{S_W}, 5\ns_add_u32 s{S_B0}, s{S_B0}, s{S_B0+1}\ns_cmp_ge_u32 s{S_B0}, {n}\ns_cbranch_scc1 {lab}')
    p.e(f's_getpc_b64 s[{S_B0+2}:{S_B0+3}]')
    p.e(f's_lshl_b32 s{S_B0}, s{S_B0}, 13')
    p.e(f'v_lshlrev_b32 v{T}, 7, v{L}\nv_add_u32 v{T}, s{S_B0}, v{T}\nv_min_u32 v{T}, {nbytes - 128}, v{T}')
    p.vm_nomodel(f'global_load_dword v0, v{T}, s[{S_B0+2}:{S_B0+3}]')
    p.e(f'{lab}:')
    p.end_bundle()
    return p

def e_z2a():
    p = Prog(); p.comment('E_z2a: gelu(z2), pack, Z^T -> LDS')
    T = V_TMP; L = V_LANE
    p.e(f'v_and_b32 v{T+8}, 31, v{L}\ns_lshl_b32 s48, s{S_W}, 5\nv_add_u32 v{T+8}, s48, v{T+8}\nv_mul_u32_u24 v{T+8}, 144, v{T+8}')
    p.e(f'v_lshrrev_b32 v{T+9}, 5, v{L}\nv_lshl_add_u32 v{T+8}, v{T+9}, 4, v{T+8}')
    p.e(f's_lshl_b32 s48, s{S_RH}, 6\ns_add_u32 s49, s48, {LDS_ZT}\ns_sub_u32 s50, {LDS_ZT + 64}, s48')
    p.e(f'v_add_u32 v{T+9}, s49, v{T+8}\nv_add_u32 v{T+10}, s50, v{T+8}')
    wt = []
    for X in range(2):
        for c in range(2):
            r0 = V_ACC0 + 16*X + 8*c
            gelu(p, r0, 8, T)
            pack(p, V_PK + 8*X + 4*c, r0, 8)
            wt.append(p.ds(f'ds_write_b128 v{T+9+X}, {vr(V_PK+8*X+4*c,4)} offset:{32*c}'))
    return p, wt

def e_z2b():
    p = Prog(); p.comment('E_z2b: row stats, publish')
    T = V_TMP; L = V_LANE
    p.e(f'v_lshrrev_b32 v{T}, 2, v{L}\nv_mul_u32_u24 v{T}, 144, v{T}')
    p.e(f'v_and_b32 v{T+1}, 3, v{L}\nv_lshl_add_u32 v{T}, v{T+1}, 3, v{T}')
    p.e(f's_lshl_b32 s48, s{S_W}, 5\ns_add_u32 s48, s48, {LDS_ZT}\nv_add_u32 v{T}, s48, v{T}')
    D = V_PK
    tk = [p.ds(f'ds_read_b64_tr_b16 {vr(D+2*k,2)}, v{T} offset:{2304*k}') for k in range(8)]
    S, Q, ones = T+2, T+3, T+6
    p.e(f'v_mov_b32 v{ones}, 0x3f803f80\nv_mov_b32 v{S}, 0\nv_mov_b32 v{Q}, 0\nv_mov_b32 v{T+7}, 0\nv_mov_b32 v{T+8}, 0')
    p.e(f's_lshl_b32 s48, s{S_I}, 3\ns_add_u32 s48, s48, s{S_J}\ns_lshl_b32 s48, s48, 10\ns_lshl_b32 s49, s{S_W}, 8\ns_add_u32 s48, s48, s49\ns_add_u32 s48, s48, {WS_S1}')
    p.e(f'v_lshlrev_b32 v{T+11}, 4, v{L}')
    p.begin_bundle()
    p.wait_lgkm(tk)
    for k in range(8):
        p.e(f'v_dot2_f32_bf16 v{S}, v{D+2*k}, v{ones}, v{S}\nv_dot2_f32_bf16 v{Q}, v{D+2*k}, v{D+2*k}, v{Q}')
        p.e(f'v_dot2_f32_bf16 v{T+7}, v{D+2*k+1}, v{ones}, v{T+7}\nv_dot2_f32_bf16 v{T+8}, v{D+2*k+1}, v{D+2*k+1}, v{T+8}')
    p.end_bundle()
    p.e(f'v_mov_b32 v{T+4}, s{S_TAG}\nv_mov_b32 v{T+5}, s{S_TAG}')
    p.e(f'v_add_f32 v{S}, v{S}, v{T+7}\nv_add_f32 v{Q}, v{Q}, v{T+8}')
    allreduce_rows(p, [S, Q], T+9)
    p.begin_bundle()
    p.e('s_mov_b64 exec, 0xffff')
    p.vm(f'buffer_store_dwordx4 {vr(S,4)}, v{T+11}, {srd(SRD_WS)}, s48 offen sc1')
    p.e('s_mov_b64 exec, -1')
    p.end_bundle()
    return p

V_G = 236
def s1_issue():
    p = Prog(); p.comment('S1 gather issue')
    L = V_LANE; A = 244
    p.e(f'v_and_b32 v{A}, 15, v{L}\nv_lshlrev_b32 v{A}, 4, v{A}\nv_lshrrev_b32 v{A+1}, 4, v{L}\nv_lshl_add_u32 v{A}, v{A+1}, 11, v{A}')
    p.e(f's_lshl_b32 s{S_B0}, s{S_I}, 13\ns_lshl_b32 s{S_B0+1}, s{S_W}, 8\ns_add_u32 s{S_B0}, s{S_B0}, s{S_B0+1}\ns_add_u32 s{S_B0}, s{S_B0}, {WS_S1}')
    t0 = p.vm(f'buffer_load_dwordx4 {vr(V_G,4)}, v{A}, {srd(SRD_WS)}, s{S_B0} offen sc1')
    t1 = p.vm(f'buffer_load_dwordx4 {vr(V_G+4,4)}, v{A}, {srd(SRD_WS)}, s{S_B0} offen offset:1024 sc1')
    return p, [t0, t1]

def s1_finish(gt):
    p = Prog(); p.comment('S1 gather finish')
    L = V_LANE; A = 244; G0, G1 = V_G, V_G+4
    l0, l1 = label('s1'), label('s1ok')
    B1, B2 = S_B0+2, S_B0+4
    def cmp(pp):
        pp(f'v_xor_b32 v{A+1}, s{S_TAG}, v{G0+2}\nv_xor_b32 v{G0+2}, s{S_TAG}, v{G0+3}\nv_or_b32 v{A+1}, v{A+1}, v{G0+2}')
        pp(f'v_xor_b32 v{G0+2}, s{S_TAG}, v{G1+2}\nv_or_b32 v{A+1}, v{A+1}, v{G0+2}\nv_xor_b32 v{G0+2}, s{S_TAG}, v{G1+3}\nv_or_b32 v{A+1}, v{A+1}, v{G0+2}')
        pp(f'v_cmp_ne_u32 vcc, 0, v{A+1}')
    p.wait_vm(gt)
    fix7 = lambda pp: pp(f'v_mov_b32 v{A+1}, s{S_TAG}\ns_mov_b32 exec_lo, 0\ns_mov_b32 exec_hi, 0xffff0000\nv_mov_b32 v{G1}, 0\nv_mov_b32 v{G1+1}, 0\nv_mov_b32 v{G1+2}, s{S_TAG}\nv_mov_b32 v{G1+3}, s{S_TAG}\ns_mov_b64 exec, -1')
    p.begin_bundle()
    fix7(p.e)
    cmp(p.e)
    p.e(f's_mov_b32 s{S_B0+1}, 0')
    p.e(f's_cbranch_vccz {l1}')
    p.e(f'{l0}:')
    p.e_nomodel('s_sleep 2')
    p.vm_nomodel(f'buffer_load_dwordx4 {vr(G0,4)}, v{A}, {srd(SRD_WS)}, s{S_B0} offen sc1')
    p.vm_nomodel(f'buffer_load_dwordx4 {vr(G1,4)}, v{A}, {srd(SRD_WS)}, s{S_B0} offen offset:1024 sc1')
    p.e_nomodel('s_waitcnt vmcnt(0)')
    fix7(p.e)
    cmp(p.e)
    p.e(f's_add_u32 s{S_B0+1}, s{S_B0+1}, 1')
    p.e(f's_cbranch_vccz {l1}')
    p.e(f's_cmp_lt_u32 s{S_B0+1}, 0x40000\ns_cbranch_scc1 {l0}')
    p.e(f'{l1}:')
    p.end_bundle()
    S, Q = G0, G0+1
    p.e(f'v_add_f32 v{S}, v{S}, v{G1}\nv_add_f32 v{Q}, v{Q}, v{G1+1}')
    allreduce_rows(p, [S, Q], G1)
    p.e(f'v_mul_f32 v{S}, {f2u(1/896):#x}, v{S}\nv_mul_f32 v{Q}, {f2u(1/896):#x}, v{Q}')
    p.e(f'v_fma_f32 v{Q}, -v{S}, v{S}, v{Q}\nv_max_f32 v{Q}, 0, v{Q}\nv_add_f32 v{Q}, {f2u(1e-5):#x}, v{Q}')
    p.e(f'v_and_b32 v{A}, 15, v{L}\nv_lshlrev_b32 v{A}, 2, v{A}\ns_lshl_b32 s{S_B0}, s{S_W}, 6\ns_add_u32 s{S_B0}, s{S_B0}, {LDS_AB}')
    p.e(f'v_rsq_f32 v{Q}, v{Q}')
    p.e(f'v_add_u32 v{A}, s{S_B0}, v{A}')
    p.e(f'v_mul_f32 v{S}, -v{S}, v{Q}')
    p.begin_bundle()
    p.e('s_mov_b64 exec, 0xffff')
    w = [p.ds(f'ds_write_b32 v{A}, v{Q}'), p.ds(f'ds_write_b32 v{A}, v{S} offset:256')]
    p.e('s_mov_b64 exec, -1')
    p.end_bundle()
    return p, w

def e_z2c():
    p = Prog(); p.comment('E_z2c: normalise z2, store z2n')
    T = V_TMP; L = V_LANE
    p.e(f'v_lshrrev_b32 v{T}, 5, v{L}\nv_lshlrev_b32 v{T}, 5, v{T}')
    p.e(f's_lshl_b32 s48, s{S_RH}, 7\ns_add_u32 s49, s48, {LDS_AB}\ns_sub_u32 s50, {LDS_AB + 128}, s48')
    p.e(f'v_add_u32 v{T+1}, s49, v{T}\nv_add_u32 v{T+2}, s50, v{T}')
    A_ = [T+8, T+16]; B_ = [T+12+0, T+20]
    Aa, Bb = T+8, T+16
    V = T+3
    p.e(f'v_lshlrev_b32 v{V}, 4, v{L}')
    p.e(f's_lshl_b32 s54, s{S_J}, 19\ns_lshl_b32 s55, s{S_W}, 17\ns_add_u32 s54, s54, s55\ns_lshl_b32 s55, s{S_I}, 12\ns_add_u32 s54, s54, s55\ns_add_u32 s54, s54, {WS_Z2N}')
    p.e(f's_lshl_b32 s55, s{S_RH}, 11\ns_add_u32 s52, s54, s55\ns_sub_u32 s53, s54, s55\ns_add_u32 s53, s53, 2048')
    toks = []
    def reads(X, c):
        return ([p.ds(f'ds_read_b128 {vr(Aa+4*k,4)}, v{T+1+X} offset:{64*c + 16*k}') for k in range(2)] +
                [p.ds(f'ds_read_b128 {vr(Bb+4*k,4)}, v{T+1+X} offset:{256 + 64*c + 16*k}') for k in range(2)])
    for X in range(2):
        for c in range(2):
            rd = reads(X, c)
            r0 = V_ACC0 + 16*X + 8*c
            p.wait_lgkm(rd)
            for k in range(8): p.e(f'v_fma_f32 v{r0+k}, v{r0+k}, v{Aa+k}, v{Bb+k}')
            O = T+24 + 4*((2*X+c) & 1)
            pack(p, O, r0, 8)
            toks.append(p.vm(f'buffer_store_dwordx4 {vr(O,4)}, v{V}, {srd(SRD_WS)}, s{52+X} offen offset:{1024*c} sc1'))
    return p, toks

def zf_issue():
    p = Prog(); L = V_LANE
    p.e(f'v_and_b32 v{V_TB}, 3, v{L}\nv_lshlrev_b32 v{V_TB}, 7, v{V_TB}\ns_lshl_b32 s{S_B0+2}, s{S_J}, 9\ns_add_u32 s{S_B0+2}, s{S_B0+2}, {WS_ZF}')
    t = flag_load(p, V_TB+1, V_TB, S_B0+2)
    return p, t

def e_kv():
    p = Prog(); p.comment('E_kv')
    T = V_TMP; L = V_LANE
    K_, V_ = V_ACC1, V_ACC1+16
    PKk, PKv = V_PK, V_PK+8
    pack(p, PKv, V_, 16)
    phi(p, K_, 16, T)
    pack(p, PKk, K_, 16)
    ones = T+8
    for k in range(4): p.e(f'v_mov_b32 v{ones+k}, 0x3f803f80')
    p.e(f'v_lshlrev_b32 v{T}, 2, v{L}\ns_mul_i32 s52, s{S_W}, 2304\ns_add_u32 s52, s52, {LDS_KVS}\nv_add_u32 v{T}, s52, v{T}')
    p.e(f'{M32} {vr(K_,16)}, {vr(PKk,4)}, {vr(PKv,4)}, 0')
    p.e(f'{M32} {vr(V_,16)}, {vr(ones,4)}, {vr(PKk,4)}, 0')
    p.e(f'{M32} {vr(K_,16)}, {vr(PKk+4,4)}, {vr(PKv+4,4)}, {vr(K_,16)}')
    p.e(f'{M32} {vr(V_,16)}, {vr(ones,4)}, {vr(PKk+4,4)}, {vr(V_,16)}')
    p2 = Prog()
    for i in range(8): p2.e(f'v_cndmask_b32 v{KVH[i]}, v{K_+i}, v{K_+8+i}, s[{S_MASK16}:{S_MASK16+1}]')
    p2.e(f'v_mov_b32 v{KVH[8]}, v{V_}')
    wt = [p2.ds(f'ds_write_b32 v{T}, v{KVH[i]} offset:{256*i}') for i in range(9)]
    p3 = Prog()
    p3.e(f'v_lshlrev_b32 v{T}, 2, v{L}\ns_xor_b32 s52, s{S_W}, 1\ns_mul_i32 s52, s52, 2304\ns_add_u32 s52, s52, {LDS_KVS}\nv_add_u32 v{T}, s52, v{T}')
    rd = [p3.ds(f'ds_read_b32 v{T+1+i}, v{T} offset:{256*i}') for i in range(9)]
    p3.wait_lgkm(rd)
    for i in range(9): p3.e(f'v_add_f32 v{KVH[i]}, v{KVH[i]}, v{T+1+i}')
    return p, p2, wt, p3

def kv_atomics(zft):
    p = Prog(); p.comment('kv atomics (rh == 0 waves)')
    T = V_TB + 4; L = V_LANE
    flag_check(p, zft, V_TB+1, V_TB, S_B0+2, 'zf', S_B0+3)
    p.e(f'v_lshlrev_b32 v{T}, 2, v{L}')
    B = S_B0
    p.e(f's_lshl_b32 s{B}, s{S_J}, 1\ns_add_u32 s{B}, s{B}, s{S_CH}\ns_lshl_b32 s{B+1}, s{B}, 7\ns_add_u32 s{B+1}, s{B+1}, {WS_ZA}\ns_lshl_b32 s{B}, s{B}, 11\ns_add_u32 s{B}, s{B}, {WS_KV}')
    p.e(f's_cmp_eq_u32 s{S_RH}, 0\ns_cselect_b32 s{B}, s{B}, {OOB:#x}\ns_cselect_b32 s{B+1}, s{B+1}, {OOB:#x}')
    toks = []
    for i in range(8): toks.append(p.vm(f'buffer_atomic_add_f32 v{KVH[i]}, v{T}, {srd(SRD_WS)}, s{B} offen offset:{256*i}'))
    p.begin_bundle()
    p.e('s_mov_b32 exec_hi, 0')
    toks.append(p.vm(f'buffer_atomic_add_f32 v{KVH[8]}, v{T}, {srd(SRD_WS)}, s{B+1} offen'))
    p.e('s_mov_b32 exec_hi, -1')
    p.end_bundle()
    return p, toks

def e_z1(packed):
    p = Prog(); p.comment('E_z1')
    if packed:
        p.e(f'v_mov_b32 v{V_GCP}, s{S_GC1}\nv_mov_b32 v{V_GCP+1}, v{V_GC0}\nv_mov_b32 v{V_GCP+2}, 1.0\nv_mov_b32 v{V_GCP+3}, 1.0')
    for c in range(4):
        if packed: gelu_pk(p, V_ACC2 + 8*c, 8, V_TMP + 20)
        else: gelu(p, V_ACC2 + 8*c, 8, V_TMP + 32)
        pack(p, V_Z1P + 4*c, V_ACC2 + 8*c, 8)
    return p

def act_voffset(p, dst, t0):
    L = V_LANE
    p.e(f'v_bfe_u32 v{t0}, v{L}, 4, 1\nv_mul_u32_u24 v{dst}, {ACT_T}, v{t0}')
    p.e(f'v_lshrrev_b32 v{t0}, 5, v{L}\nv_lshl_add_u32 v{dst}, v{t0}, 8, v{dst}')
    p.e(f'v_and_b32 v{t0}, 15, v{L}\nv_lshl_add_u32 v{dst}, v{t0}, 4, v{dst}')

def o_issue():
    p = Prog(); p.comment('o: issue kv loads')
    T = V_TMP; L = V_LANE
    KV = T; ZF = T+8
    p.e(f'v_lshlrev_b32 v{T+28}, 2, v{L}')
    p.e(f's_lshl_b32 s52, s{S_J}, 1\ns_add_u32 s52, s52, s{S_CH}\ns_lshl_b32 s53, s52, 7\ns_add_u32 s53, s53, {WS_ZA}\ns_lshl_b32 s52, s52, 11\ns_add_u32 s52, s52, {WS_KV}')
    tk = [p.vm(f'buffer_load_dword v{KV+i}, v{T+28}, {srd(SRD_WS)}, s52 offen offset:{256*i} sc1') for i in range(8)]
    p.e(f'v_bfe_u32 v{T+29}, v{L}, 4, 1\nv_xor_b32 v{T+29}, 1, v{T+29}\nv_lshlrev_b32 v{T+29}, 6, v{T+29}\nv_lshrrev_b32 v{T+27}, 5, v{L}\nv_lshl_add_u32 v{T+29}, v{T+27}, 4, v{T+29}')
    tk.append(p.vm(f'buffer_load_dwordx4 {vr(ZF,4)}, v{T+29}, {srd(SRD_WS)}, s53 offen sc1'))
    tk.append(p.vm(f'buffer_load_dwordx4 {vr(ZF+4,4)}, v{T+29}, {srd(SRD_WS)}, s53 offen offset:32 sc1'))
    return p, tk

def o_compute(tk):
    pq = Prog(); pq.comment('E_q')
    phi(pq, V_ACCQ, 16, V_TMP + 32)
    pack(pq, V_PQ, V_ACCQ, 16)
    p = Prog(); p.comment('o compute')
    T = V_TMP
    KV = T; ZF = T+8
    p.wait_vm(tk)
    KP, ZP = T+16, T+20
    pack(p, KP, KV, 8); pack(p, ZP, ZF, 8)
    Aa, Ab = T, T+4
    m = f's[{S_MASK16}:{S_MASK16+1}]'
    for k in range(4):
        p.e(f'v_cndmask_b32 v{Aa+k}, v{KP+k}, v{ZP+k}, {m}')
        p.e(f'v_cndmask_b32 v{Ab+k}, v{ZP+k}, v{KP+k}, {m}')
    Da, Db = V_ACC1, V_ACC1+16
    p.e(f'{M32} {vr(Da,16)}, {vr(Aa,4)}, {vr(V_PQ,4)}, 0')
    p.e(f'{M32} {vr(Db,16)}, {vr(Ab,4)}, {vr(V_PQ+4,4)}, 0')
    act_voffset(p, T+24, T+25)
    p.e(f's_mul_i32 s52, s{S_I}, {ACT_I}\ns_mul_i32 s53, s{S_RH}, {2*ACT_T}\ns_add_u32 s52, s52, s53\ns_lshl_b32 s53, s{S_J}, 11\ns_add_u32 s52, s52, s53\ns_lshl_b32 s53, s{S_CH}, 10\ns_add_u32 s52, s52, s53\ns_add_u32 s52, s52, {WS_ACT}')
    p2 = Prog()
    p2.e(f'v_add_f32 v{T+8}, s{S_EPS6}, v{Da+8}\nv_add_f32 v{T+9}, s{S_EPS6}, v{Db}')
    p2.e(f'v_rcp_f32 v{T+8}, v{T+8}\nv_rcp_f32 v{T+9}, v{T+9}')
    for i in range(8): p2.e(f'v_mul_f32 v{Da+i}, v{Da+i}, v{T+8}\nv_mul_f32 v{Db+8+i}, v{Db+8+i}, v{T+9}')
    Oa, Ob = T+12, T+16
    pack(p2, Oa, Da, 8); pack(p2, Ob, Db+8, 8)
    t1 = p2.vm(f'buffer_store_dwordx4 {vr(Oa,4)}, v{T+24}, {srd(SRD_WS)}, s52 offen sc1')
    t2 = p2.vm(f'buffer_store_dwordx4 {vr(Ob,4)}, v{T+24}, {srd(SRD_WS)}, s52 offen offset:512 sc1')
    return pq, p, p2, [t1, t2]

def publish(base, a_reg, a_shift, b_reg, extra=None):
    p = Prog()
    B = S_B0
    p.e(f's_lshl_b32 s{B}, s{a_reg}, {a_shift}\ns_add_u32 s{B}, s{B}, s{b_reg}\ns_lshl_b32 s{B}, s{B}, 7\ns_add_u32 s{B}, s{B}, {base}')
    p.e(f's_cmp_eq_u32 s{S_W}, 0\ns_cselect_b32 s{B}, s{B}, {OOB:#x}')
    flag_store(p, B, V_TB+2)
    return p

def sp_addr_setup(T):
    p = Prog(); L = V_LANE; t0, t1, t2 = T, T+1, T+2
    p.e(f'v_lshrrev_b32 v{t0}, 3, v{L}\nv_and_b32 v{t1}, 7, v{L}\nv_lshrrev_b32 v{t2}, 1, v{t0}')
    p.e(f'v_xor_b32 v{t1}, v{t1}, v{t2}\nv_lshlrev_b32 v{t0}, 12, v{t0}')
    for g in range(4):
        if g & 1: p.e(f'v_xor_b32 v{t2}, 4, v{t1}\nv_lshl_add_u32 v{V_SDMA+g}, v{t2}, 4, v{t0}')
        else: p.e(f'v_lshl_add_u32 v{V_SDMA+g}, v{t1}, 4, v{t0}')
        if g: p.e(f'v_add_u32 v{V_SDMA+g}, {g*8*4096 - g*1024}, v{V_SDMA+g}')
    return p

def w3_addr_setup(T):
    p = Prog(); L = V_LANE; t0, t1, t2 = T, T+1, T+2
    p.e(f'v_lshrrev_b32 v{t0}, 3, v{L}\nv_and_b32 v{t1}, 7, v{L}\nv_and_b32 v{t2}, 6, v{t0}')
    p.e(f'v_xor_b32 v{t1}, v{t1}, v{t2}')
    p.e(f'v_lshlrev_b32 v{t0}, 10, v{t0}\nv_lshl_add_u32 v{V_W3DMA}, v{t1}, 4, v{t0}')
    for u in range(1, 4): p.e(f'v_add_u32 v{V_W3DMA+u}, {u*8*1024 - u*1024}, v{V_W3DMA}')
    return p

def p2_setup(T):
    p = Prog(); L = V_LANE
    pi_rho(p, T, L, T+1)
    p.e(f'v_bfe_u32 v{T+1}, v{T}, 1, 3\nv_lshrrev_b32 v{T+2}, 5, v{L}\nv_xor_b32 v{T+1}, v{T+1}, v{T+2}')
    p.e(f'v_lshlrev_b32 v{T}, 7, v{T}')
    p.e(f's_lshl_b32 s48, s{S_RH}, 12\ns_xor_b32 s49, s48, 4096\ns_add_u32 s48, s48, {slot(NP1)}\ns_add_u32 s49, s49, {slot(NP1)}')
    for beta in range(4):
        p.e(f'v_xor_b32 v{T+2}, {2*beta}, v{T+1}\nv_lshl_add_u32 v{T+2}, v{T+2}, 4, v{T}')
        p.e(f'v_add_u32 v{V_SPRD+beta}, s48, v{T+2}\nv_add_u32 v{V_SPRD+4+beta}, s49, v{T+2}')
    return p

def p2_setup_early(T):
    p = Prog(); L = V_LANE
    V = V_Z2OFF
    p.e(f'v_lshlrev_b32 v{V}, 4, v{L}')
    pi_rho(p, T, L, T+1)
    p.e(f'v_lshlrev_b32 v{T}, 1, v{T}')
    p.e(f's_lshl_b32 s{S_B0}, s{S_I}, 7\ns_lshl_b32 s{S_B0+1}, s{S_RH}, 6\ns_add_u32 s{S_B0+2}, s{S_B0}, s{S_B0+1}\ns_xor_b32 s{S_B0+1}, s{S_B0+1}, 64\ns_add_u32 s{S_B0+1}, s{S_B0}, s{S_B0+1}')
    t1 = p.vm(f'buffer_load_ushort v{V_BSP}, v{T}, {srd(SRD_BSP)}, s{S_B0+2} offen')
    t2 = p.vm(f'buffer_load_ushort v{V_BSP+1}, v{T}, {srd(SRD_BSP)}, s{S_B0+1} offen')
    p.e(f's_lshl_b32 s{S_Z2}, s{S_J}, 19\ns_lshl_b32 s{S_B0}, s{S_W}, 17\ns_add_u32 s{S_Z2}, s{S_Z2}, s{S_B0}\ns_add_u32 s{S_Z2}, s{S_Z2}, {WS_Z2N}\ns_cmp_eq_u32 s{S_J}, 7\ns_cselect_b32 s{S_Z2B}, {OOB:#x}, s{S_Z2}')
    return p, [t1, t2]

def h_epilogue(btoks):
    p = Prog(); p.comment('h epilogue')
    T = V_TMP
    p.wait_vm(btoks)
    toks = []
    n = 0
    for X in range(2):
        for c in range(2):
            O = T+4 + 4*(n & 1); n += 1
            for d in range(4):
                zp = V_Z1P + 8*X + 4*c + d; t = T+12 + 2*d
                p.e(f'v_lshlrev_b32 v{t}, 16, v{zp}\nv_and_b32 v{t+1}, 0xffff0000, v{zp}')
            for d in range(4):
                g = V_ACC0 + 16*X + 8*c + 2*d
                p.e(f'v_pk_add_f32 {vr(g,2)}, {vr(g,2)}, {vr(V_BSP,2)} op_sel:[0,{X}] op_sel_hi:[1,{X}]')
            for d in range(4):
                g = V_ACC0 + 16*X + 8*c + 2*d; t = T+12 + 2*d
                p.e(f'v_pk_mul_f32 {vr(g,2)}, {vr(g,2)}, {vr(t,2)}')
            for d in range(4):
                g = V_ACC0 + 16*X + 8*c + 2*d
                p.e(f'v_cvt_pk_bf16_f32 v{O+d}, v{g}, v{g+1}')
            so = (54 + X) if c == 0 else (48 + X)
            toks.append(p.vm(f'buffer_store_dwordx4 {vr(O,4)}, v{T}, {srd(SRD_WS)}, s{so} offen sc1'))
    return p, toks

def h_setup():
    p = Prog(); T = V_TMP
    p.e(f'v_lshlrev_b32 v{V_BSP}, 16, v{V_BSP}\nv_lshlrev_b32 v{V_BSP+1}, 16, v{V_BSP+1}')
    act_voffset(p, T, T+1)
    p.e(f's_mul_i32 s52, s{S_I}, {ACT_I}\ns_lshl_b32 s53, s{S_J}, 12\ns_add_u32 s52, s52, s53\ns_lshl_b32 s53, s{S_W}, 10\ns_add_u32 s52, s52, s53\ns_add_u32 s52, s52, {WS_ACT + 32*512}')
    p.e(f's_cmp_eq_u32 s{S_J}, 7\ns_cselect_b32 s52, {OOB:#x}, s52')
    p.e(f's_mul_i32 s53, s{S_RH}, {2*ACT_T}\ns_add_u32 s54, s52, s53\ns_sub_u32 s55, s52, s53\ns_add_u32 s55, s55, {2*ACT_T}')
    p.e(f's_add_u32 s48, s54, 512\ns_add_u32 s49, s55, 512')
    return p

SENT = 0xffffffff
SENTSC = [1]
XB_FREE = 96
def sentinel_stores(D):
    p = Prog(); T = 100
    act_voffset(p, T, T+1)
    B = S_B0
    p.e(f's_mul_i32 s{B}, s{S_I}, {ACT_I}\ns_lshl_b32 s{B+1}, s{S_J}, 12\ns_add_u32 s{B}, s{B}, s{B+1}\ns_lshl_b32 s{B+1}, s{S_W}, 10\ns_add_u32 s{B}, s{B}, s{B+1}\ns_add_u32 s{B}, s{B}, {WS_ACT + 32*512}')
    p.e(f's_cmp_eq_u32 s{S_J}, 7\ns_cselect_b32 s{B}, {OOB:#x}, s{B}\ns_add_u32 s{B+1}, s{B}, {2*ACT_T}')
    for k in range(4): p.e(f'v_mov_b32 v{D+k}, -1')
    toks = []
    for so in (B, B+1):
        for c in range(2):
            toks.append(p.vm(f'buffer_store_dwordx4 {vr(D,4)}, v{T}, {srd(SRD_WS)}, s{so} offen offset:{512*c}' + (' sc1' if SENTSC[0] else '')))
    return p, toks

def h_poll(T):
    p = Prog(); L = V_LANE; B = S_B0
    l0, l1 = label('hp'), label('hpok')
    p.e(f'v_lshrrev_b32 v{T}, 2, v{L}\nv_min_u32 v{T}, 6, v{T}\nv_lshlrev_b32 v{T}, 12, v{T}\nv_and_b32 v{T+1}, 3, v{L}\nv_lshl_add_u32 v{T}, v{T+1}, 10, v{T}')
    p.e(f's_mul_i32 s{B}, s{S_I}, {ACT_I}\ns_mul_i32 s{B+1}, s{S_W}, {ACT_T}\ns_add_u32 s{B}, s{B}, s{B+1}\ns_add_u32 s{B}, s{B}, {WS_ACT + 33*512}')
    p.begin_bundle()
    p.e(f's_mov_b32 s{B+1}, 0')
    p.e(f'{l0}:')
    p.vm_nomodel(f'buffer_load_dword v{T+1}, v{T}, {srd(SRD_WS)}, s{B} offen sc1')
    p.e_nomodel('s_waitcnt vmcnt(0)')
    p.e(f'v_cmp_eq_u32 vcc, -1, v{T+1}')
    p.e(f's_add_u32 s{B+1}, s{B+1}, 1')
    p.e(f's_cbranch_vccz {l1}')
    p.e(f's_cmp_lt_u32 s{B+1}, 0x40000\ns_cbranch_scc1 {l0}')
    p.e(f'{l1}:')
    p.end_bundle()
    return p

def h_verify(kp, areg_, voff, soff_base, off, T):
    p = Prog(); B = S_B0
    l0, l1 = label('hv'), label('hvok')
    p.begin_bundle()
    p.e(f'v_accvgpr_read_b32 v{T}, a{areg_+3}')
    p.e(f'v_cmp_eq_u32 vcc, -1, v{T}')
    p.e(f's_cbranch_vccz {l1}')
    p.e(f's_mov_b32 s{B+1}, 0')
    p.e(f'{l0}:')
    p.e(f's_add_u32 s{B+2}, s{soff_base}, {off}')
    p.vm_nomodel(f'buffer_load_dwordx4 {ar(areg_,4)}, v{voff}, {srd(SRD_WS)}, s{B+2} offen sc1')
    p.e_nomodel('s_waitcnt vmcnt(0)')
    p.e(f'v_accvgpr_read_b32 v{T}, a{areg_+3}')
    p.e(f'v_cmp_eq_u32 vcc, -1, v{T}')
    p.e(f's_add_u32 s{B+1}, s{B+1}, 1')
    p.e(f's_cbranch_vccz {l1}')
    p.e(f's_cmp_lt_u32 s{B+1}, 0x40000\ns_cbranch_scc1 {l0}')
    p.e(f'{l1}:')
    p.end_bundle()
    return p

def p3_setup(T):
    p = Prog(); L = V_LANE
    p.e(f'v_and_b32 v{T}, 15, v{L}\ns_and_b32 s{S_B0}, s{S_W}, 1\ns_lshl_b32 s{S_B0}, s{S_B0}, 4\nv_add_u32 v{T}, s{S_B0}, v{T}')
    pi_rho(p, T+1, T, T+2)
    p.e(f'v_lshlrev_b32 v{T+1}, 10, v{T+1}\nv_lshrrev_b32 v{T+2}, 4, v{L}\nv_lshl_add_u32 v{V_OUTOFF}, v{T+2}, 3, v{T+1}')
    p.e(f's_lshl_b32 s{S_OUT}, s{S_I}, 16\ns_lshr_b32 s{S_B0}, s{S_W}, 1\ns_lshl_b32 s{S_B0}, s{S_B0}, 15\ns_add_u32 s{S_OUT}, s{S_OUT}, s{S_B0}\ns_lshl_b32 s{S_B0}, s{S_J}, 7\ns_add_u32 s{S_OUT}, s{S_OUT}, s{S_B0}')
    p.e(f's_mul_i32 s{S_A3}, s{S_I}, {ACT_I}\ns_mul_i32 s{S_B0}, s{S_W}, {ACT_T}\ns_add_u32 s{S_A3}, s{S_A3}, s{S_B0}\ns_add_u32 s{S_A3}, s{S_A3}, {WS_ACT}\ns_mov_b32 s{S_H3}, s{S_A3}')
    return p

def w3_rd_setup(T, s0):
    p = Prog(); L = V_LANE
    p.e(f'v_lshrrev_b32 v{T}, 5, v{L}\nv_bfe_u32 v{T+1}, v{L}, 4, 1\nv_bfe_u32 v{T+2}, v{L}, 2, 2')
    p.e(f'v_lshlrev_b32 v{T+3}, 4, v{T}\nv_lshl_add_u32 v{T+3}, v{T+1}, 2, v{T+3}\nv_add_u32 v{T+3}, v{T+3}, v{T+2}\nv_lshlrev_b32 v{T+3}, 7, v{T+3}')
    p.e(f'v_and_b32 v{T+4}, 3, v{L}\nv_lshl_add_u32 v{T+3}, v{T+4}, 3, v{T+3}\nv_add_u32 v{T+3}, {slot(s0)}, v{T+3}')
    p.e(f'v_lshrrev_b32 v{T+2}, 1, v{T+2}\nv_lshl_add_u32 v{T+2}, v{T+1}, 1, v{T+2}')
    for q in range(4): p.e(f'v_xor_b32 v{T+4}, {q}, v{T+2}\nv_lshl_add_u32 v{V_W3RD+q}, v{T+4}, 5, v{T+3}')
    return p

def final_epilogue(p, xt):
    T = V_TMP
    C, ONE = T+32, T+34
    p.e(f'v_mov_b32 v{C}, s{S_L2E}\nv_mov_b32 v{C+1}, s{S_L2E}\nv_mov_b32 v{ONE}, 1.0\nv_mov_b32 v{ONE+1}, 1.0')
    for k in range(8): p.e(f'v_pk_mul_f32 {vr(T+2*k,2)}, {vr(V_B3+2*k,2)}, {vr(C,2)}')
    for k in range(16): p.e(f'v_exp_f32 v{T+k}, -v{T+k}')
    for k in range(8): p.e(f'v_pk_mul_f32 {vr(V_B3+2*k,2)}, {vr(V_B3+2*k,2)}, {vr(V_S3+2*k,2)}')
    for k in range(8): p.e(f'v_pk_add_f32 {vr(T+2*k,2)}, {vr(T+2*k,2)}, {vr(ONE,2)}')
    for k in range(16): p.e(f'v_rcp_f32 v{T+k}, v{T+k}')
    p.wait_vm(xt)
    for k in range(8): p.e(f'v_lshlrev_b32 v{T+16+2*k}, 16, v{V_XR+k}\nv_and_b32 v{T+17+2*k}, 0xffff0000, v{V_XR+k}')
    for q in range(4):
        for d in range(2):
            k = 2*q + d
            p.e(f'v_pk_fma_f32 {vr(T+2*k,2)}, {vr(T+2*k,2)}, {vr(V_B3+2*k,2)}, {vr(T+16+2*k,2)}')
        p.e(f'v_cvt_pk_bf16_f32 v{V_S3+2*q}, v{T+4*q}, v{T+4*q+1}\nv_cvt_pk_bf16_f32 v{V_S3+2*q+1}, v{T+4*q+2}, v{T+4*q+3}')
        p.vm(f'buffer_store_dwordx2 {vr(V_S3+2*q,2)}, v{V_OUTOFF}, {srd(SRD_OUT)}, s{S_OUT} offen offset:{32*q}')

def build(cfg):
    p = Prog()
    p.e('s_cmp_ge_u32 s2, 256\ns_cbranch_scc1 L_end')
    if cfg.stamps: p.e('v_mov_b32 v255, 0')
    stamp(p, cfg, 'rt0', True); stamp(p, cfg, 'start')
    xt, XB, vwb = prologue(p, cfg)
    dtoks = {}
    TP = V_TMP + 4
    if cfg.mall == 1: mall_prefetch(p, cfg)
    za = Prog(); z_addr_setup(za, 246); p.extend(za)
    if cfg.touch: p.extend(code_touch(234, cfg.codebytes))
    ez = Prog(); et, zt = epoch_zero(ez, 246); p.extend(ez)
    stamp(p, cfg, 'xissued')
    if cfg.stamps and cfg.xst:
        p.wait_vm(xt[0]); stamp(p, cfg, 'x0'); p.wait_vm(xt[-1]); stamp(p, cfg, 'x15')
    st = Prog(); AB = p0_stats(st, xt, XB, TP)
    nm = Prog(); p0_norm(nm, XB, TP, AB, vwb)
    ka = Prog(); k_addr_setup(ka, 240)
    ef = Prog(); epoch_finish(ef, et, zt, 246)
    SENTSC[0] = cfg.sentsc
    sst, sstt = sentinel_stores(XB_FREE)
    pre_ = Prog(); dm = Prog(); post_ = Prog()
    order = [('d', 0), ('d', 1), ('tw', 0), ('d', 2), ('s', 0)]
    for idx, (kind, s_) in enumerate(order):
        dst = pre_ if idx < cfg.p0pre else (dm if idx < cfg.p0pre + cfg.p0mid else post_)
        if kind == 'd': dst.extend(dma_stage(s_, dtoks))
        elif kind == 'tw':
            if cfg.touch: dst.extend(touch_weights(238))
        elif cfg.sent: dst.extend(sst)
    if cfg.touch and not cfg.touch2:
        tp, tl = touches(238); post_.extend(tp)
        for t_ in tl:
            if t_.startswith('buffer'): post_.vm(t_)
            else: post_.e(t_)
        post_.extend(touch_w3(238))
    p.extend(pre_)
    p.extend(ka)
    sA = Prog(); sB = Prog()
    if cfg.xst: stamp(sA, cfg, 'stats'); stamp(sB, cfg, 'normb')
    body = st.L + sA.L + nm.L + sB.L
    du = units(dm.L); nb = len(body); out = []; di = 0
    vmu = [k for k, u in enumerate(du) if any(i.kind == 'vmem' for i in u)]
    nv = len(vmu); vdone = 0
    for k, ins in enumerate(body):
        out.append(ins)
        tgt = ((k + 1) * nv) // nb
        while vdone < tgt and di < len(du):
            u = du[di]; out.extend(u); di += 1
            if any(i.kind == 'vmem' for i in u): vdone += 1
    for u in du[di:]: out.extend(u)
    p.extend(out)
    p.extend(post_)
    if cfg.mall == 2: mall_prefetch(p, cfg)
    if cfg.xst: stamp(p, cfg, 'ka')
    p.extend(ef)
    if cfg.xst: stamp(p, cfg, 'ef')
    p.drain_lgkm()
    stamp(p, cfg, 'normed')
    p.wait_vm(dtoks[0])
    p.e('s_barrier')
    stamp(p, cfg, 'bar0')

    steps = []; bar = {}
    def new_step(): s = Prog(); steps.append(s); return s
    P1 = []
    for s in range(NP1):
        typ, blk, k = STAGES[s]; nb_ = 16 if typ == 'Q' else 8
        for bl in range(nb_): P1.append((s, bl, k*nb_ + bl, typ, blk, nb_))
    ACC = {'z2': V_ACC0, 'kv': V_ACC1, 'z1': V_ACC2, 'q': V_ACCQ}
    rt = {}; xk = {}
    def p1_reads(q, n):
        s, bl, bg, typ, blk, nb_ = P1[n]
        if bl == 0: q.e(f'v_add_u32 v{V_RD + (s&1)}, {slot(s)}, v{V_ZRD if typ == "Z" else V_KRD}')
        rb = V_RD + (s & 1); wf = V_WF + 8*(n % 4)
        if typ == 'Z': rt[n] = [q.ds(f'ds_read_b64_tr_b16 {vr(wf+2*t,2)}, v{rb} offset:{2048*bl + 512*t}') for t in range(2)]
        elif typ == 'KV': rt[n] = [q.ds(f'ds_read_b64_tr_b16 {vr(wf+4*pt+2*t,2)}, v{rb} offset:{2048*bl + 512*t + 16384*pt}') for pt in range(2) for t in range(2)]
        else: rt[n] = [q.ds(f'ds_read_b64_tr_b16 {vr(wf+2*t,2)}, v{rb} offset:{2048*bl + 512*t}') for t in range(2)]
    def x_reads(q, b):
        if b % 8 == 0 and b > 0:
            d = 256 * ((b >> 3) ^ ((b >> 3) - 1))
            for k in range(16): q.e(f'v_xor_b32 v{V_XRD+k}, {d}, v{V_XRD+k}')
        xk[b] = [q.ds(f'ds_read_b128 {ar(4*b,4)}, v{V_XRD + (b & 7)}'), q.ds(f'ds_read_b128 {ar(128+4*b,4)}, v{V_XRD + 8 + (b & 7)}')]
    pre = Prog()
    x_reads(pre, 0); p1_reads(pre, 0); x_reads(pre, 1); p1_reads(pre, 1); x_reads(pre, 2); x_reads(pre, 3)
    p.extend(pre)
    xnext = 4
    for n, (s, bl, bg, typ, blk, nb_) in enumerate(P1):
        q = new_step()
        if bl == nb_ - 2: bar[s+1] = n
        w = list(rt[n])
        if blk == 'z2': w += xk[bg]
        q.wait_lgkm(w)
        wf = V_WF + 8*(n % 4); acc = ACC[blk]
        c0 = lambda a: ('0' if bg == 0 else vr(a, 16))
        if blk == 'z2':
            m1 = f'{M32} {vr(acc,16)}, {ar(4*bg,4)}, {vr(wf,4)}, {c0(acc)}'
            m2 = f'{M32} {vr(acc+16,16)}, {ar(128+4*bg,4)}, {vr(wf,4)}, {c0(acc+16)}'
        elif blk == 'z1':
            m1 = f'{M32} {vr(acc,16)}, {vr(wf,4)}, {ar(4*bg,4)}, {c0(acc)}'
            m2 = f'{M32} {vr(acc+16,16)}, {vr(wf,4)}, {ar(128+4*bg,4)}, {c0(acc+16)}'
        elif blk == 'kv':
            m1 = f'{M32} {vr(acc,16)}, {ar(4*bg,4)}, {vr(wf,4)}, {c0(acc)}'
            m2 = f'{M32} {vr(acc+16,16)}, {ar(4*bg,4)}, {vr(wf+4,4)}, {c0(acc+16)}'
        else:
            m1 = f'{M32} {vr(acc,16)}, {vr(wf,4)}, {ar(4*bg,4)}, {c0(acc)}'; m2 = None
        q.e(m1)
        if n + 2 < len(P1): p1_reads(q, n+2)
        if m2: q.e(m2)
        if xnext < 32:
            tgt = min(32, 4 + (28 * (n + 1) + 12) // 13)
            while xnext < tgt: x_reads(q, xnext); xnext += 1
    P2_0 = len(steps)
    ZD = cfg.zdepth
    ZA = 128
    zt_ = {}; sr = {}
    def zload(q, b):
        if b >= 128: return
        if cfg.noz:
            zt_[b] = []; return
        q.begin_bundle()
        if b % 16 == 0: q.e(f's_xor_b32 s{S_Z2}, s{S_R2}, {b // 16}\ns_lshl_b32 s{S_Z2}, s{S_Z2}, 14\ns_add_u32 s{S_Z2}, s{S_Z2}, s{S_Z2B}')
        elif b % 4 == 0: q.e(f's_add_u32 s{S_Z2}, s{S_Z2}, 4096')
        zt_[b] = q.vm(f'buffer_load_dwordx4 {ar(ZA + 4*(b % 32),4)}, v{V_Z2OFF}, {srd(SRD_WS)}, s{S_Z2} offen offset:{1024*(b%4)}' + (' sc1' if cfg.zsc1 else ''))
        q.end_bundle()
    def sp_reads(q, b):
        if b >= 128: return
        st_, bl = b // 16, b % 16; s = NP1 + st_
        f = V_SPF + 8*(b % 3); seg, beta = bl // 4, bl % 4
        if bl == 0 and st_ > 0:
            d = slot(s) - slot(s-1)
            for k in range(8): q.e(f'v_add_u32 v{V_SPRD+k}, {d}, v{V_SPRD+k}' if d >= 0 else f'v_subrev_u32 v{V_SPRD+k}, {-d}, v{V_SPRD+k}')
        sr[b] = [q.ds(f'ds_read_b128 {vr(f+4*X,4)}, v{V_SPRD+4*X+beta} offset:{8192*seg}') for X in range(2)]
    p2front = Prog()
    p2steps = []
    for b in range(128):
        q = new_step(); p2steps.append(q)
        st_, bl = b // 16, b % 16
        if bl == 14: bar[NP1 + st_ + 1] = P2_0 + b
    P3_0 = len(steps)
    S3_0 = NP1 + 8
    at = {}; wr = {}
    def areg(kp): return 4*kp
    def aload(q, kp):
        q.begin_bundle()
        if kp % 4 == 0 and kp > 0: q.e(f's_add_u32 s{S_A3}, s{S_A3}, 4096')
        at[kp] = q.vm(f'buffer_load_dwordx4 {ar(areg(kp),4)}, v{V_Z2OFF+0 if False else 254 if False else V_AOFF}, {srd(SRD_WS)}, s{S_A3} offen offset:{1024*(kp%4)} sc1')
        q.end_bundle()
    def wreads(q, kp):
        if kp >= 44: return
        s = S3_0 + kp // 8; kl = kp % 8
        if kl == 0 and kp > 0 and kp != 16:
            d = slot(s) - slot(s-1)
            for qq in range(4): q.e(f'v_add_u32 v{V_W3RD+qq}, {d}, v{V_W3RD+qq}' if d >= 0 else f'v_subrev_u32 v{V_W3RD+qq}, {-d}, v{V_W3RD+qq}')
        f = V_W3F + 16*(kp % 3)
        wr[kp] = [q.ds(f'ds_read_b64_tr_b16 {vr(f+4*qq+2*t,2)}, v{V_W3RD+qq} offset:{4096*kl + 1024*t}') for qq in range(4) for t in range(2)]
    p3steps = []
    for kp in range(44):
        q = new_step(); p3steps.append(q)
        if kp % 8 == 6 and kp < 16: bar[S3_0 + kp // 8 + 1] = P3_0 + kp

    W = Weaver(steps)
    init = Prog()
    for b in range(ZD): zload(init, b)
    sp0 = Prog(); sp_reads(sp0, 0); sp_reads(sp0, 1)
    for b in range(128):
        q = p2steps[b]
        q.wait_vm(zt_[b]); q.wait_lgkm(sr[b])
        f = V_SPF + 8*(b % 3)
        for X in range(2):
            acc = V_ACC0 + 16*X
            q.e(f'{M32} {vr(acc,16)}, {ar(ZA + 4*(b % 32),4)}, {vr(f+4*X,4)}, {"0" if b == 0 else vr(acc,16)}')
            if X == 0: sp_reads(q, b+2)
            else: zload(q, b + ZD)
    oload = Prog()
    for kp in range(16): aload(oload, kp)
    hl = {}
    for kp in range(16, 44):
        hl[kp] = Prog(); aload(hl[kp], kp)
    w0 = Prog(); wreads(w0, 0); wreads(w0, 1)
    w16 = Prog(); wreads(w16, 16); wreads(w16, 17)
    for kp in range(44):
        q = p3steps[kp]
        rq = Prog()
        if not (kp in (14, 15)): wreads(rq, kp+2)
        q.wait_vm(at[kp])
        q.wait_lgkm(wr[kp])
        f = V_W3F + 16*(kp % 3); acc = V_S3 if kp < 16 else V_B3; first = kp in (0, 16)
        R = rq.L; pre_ = [i for i in R if i.kind != 'ds']; ds_ = [i for i in R if i.kind == 'ds']
        for qq in range(4):
            q.e(f'{M16} {vr(acc+4*qq,4)}, {vr(f+4*qq,4)}, {ar(areg(kp),4)}, {"0" if first else vr(acc+4*qq,4)}')
            if qq == 0: q.L.extend(pre_)
            q.L.extend(ds_[2*qq:2*qq+2])
        if kp >= 16:
            if cfg.sent: q.e(f'v_accvgpr_read_b32 v{V_TB+2}, a{areg(kp)+3}\nv_max_u32 v{V_TB+3}, v{V_TB+3}, v{V_TB+2}')
            for k2 in (16 + cfg.hinit + 2*(kp-16), 16 + cfg.hinit + 2*(kp-16) + 1):
                if k2 < 44: q.extend(hl[k2])

    prebar = {s: Prog() for s in bar}
    postbar = {s: Prog() for s in bar}
    dmap = {s: dma_stage(s, dtoks) for s in range(3, len(STAGES))}
    if cfg.nosp:
        for s in range(14, 22):
            dmap[s] = Prog(); dmap[s].e('s_nop 0'); dtoks[s] = []
    if cfg.nodma:
        for s in range(3, 14):
            dmap[s] = Prog(); dmap[s].e('s_nop 0'); dtoks[s] = []
    z2a, z2aw = e_z2a(); z2b = e_z2b()
    s1i, s1t = s1_issue(); s1f, s1w = s1_finish(s1t)
    z2c, z2ct = e_z2c()
    zfi, zft = zf_issue()
    kv1, kv2, kvw, kv3 = e_kv()
    kva, kvt = kv_atomics(zft)
    z1e = e_z1(0)
    oi, oit = o_issue(); pqp, oc1, oc2, ot = o_compute(oit)
    p2e, btoks = p2_setup_early(V_TB+4)
    hs = h_setup(); he, ht = h_epilogue(btoks)
    if cfg.sent: prebar[cfg.z2b_bar].wait_vm(sstt)
    prebar[2].wait_lgkm([t for b in range(32) for t in xk[b]])
    if not cfg.noside:
        prebar[cfg.z2b_bar].wait_lgkm(z2aw)
        prebar[cfg.ab_bar].wait_lgkm(s1w)
        prebar[cfg.s2bar].wait_vm(z2ct)
    postbar[cfg.s2bar].extend(publish(WS_F2, S_J, 5, S_I))
    if not cfg.noside2:
        prebar[cfg.fkbar].wait_vm(kvt)
        prebar[cfg.s3bar].wait_vm(ot)
    postbar[cfg.fkbar].extend(publish(WS_FK, S_J, 5, S_I))
    postbar[cfg.s3bar].extend(publish(WS_F3, S_I, 3, S_J))
    for s, n in bar.items():
        b_ = Prog(); b_.comment(f'--- barrier for stage {s}')
        if cfg.bst == 2 and 5 <= s <= 13: stamp(b_, cfg, f'pre{s}')
        if s < len(STAGES): b_.wait_vm(dtoks[s])
        if cfg.bst == 2 and 5 <= s <= 13: stamp(b_, cfg, f'vm{s}')
        b_.extend(prebar[s])
        if not (cfg.nobar and s <= 14): b_.e('s_barrier')
        if cfg.bst == 1 or (cfg.bst == 2 and 4 <= s <= 14) or s in (4, 8, 12, 14, 18, 22): stamp(b_, cfg, f'B{s}')
        b_.extend(postbar[s])
        W.at(b_, n, front=True)
    W.fill(dmap[3].L + dmap[4].L, bar[2] + 1, bar[3], by_units=True)
    LAST = len(STAGES) - 1
    for s in range(5, LAST):
        pr = dmap[s]
        if s == NP1: pr = Prog(); pr.extend(sp_addr_setup(252)); pr.extend(dmap[s])
        if s == NP1 + 8: pr = Prog(); pr.extend(w3_addr_setup(252)); pr.extend(dmap[s])
        if s == LAST - 1: a, b = bar[s-2], bar[s-2] + 1
        else: a, b = bar[s-2] + 1, bar[s-1]
        b2 = a + max(1, ((b - a) * cfg.dfrac) // 100)
        W.fill(pr, a, b2, by_units=True)
    if not cfg.noside:
        W.fill(z2a, 33, cfg.z2a_end)
        zb = bar[cfg.z2b_bar]
        W.fill(z2b, zb + 1, zb + 5)
        ab = bar[cfg.ab_bar]
        W.fill(s1i, ab - 9, ab - 8)
        W.fill(s1f, ab - 4, ab)
        W.fill(z2c, ab + 1, ab + 8)
    if cfg.touch2:
        tp, tl = touches(238)
        tq = Prog(); tq.extend(tp)
        for t_ in tl:
            if t_.startswith('buffer'): tq.vm(t_)
            else: tq.e(t_)
        tq.extend(touch_w3(238))
        W.fill(tq, cfg.touch2, cfg.touch2 + 8)
    W.fill(p2e, 104, 110)
    W.fill(zfi, 112, 113)
    fr = Prog()
    stamp(fr, cfg, 'p1end')
    T = V_TB
    fr.e(f'v_and_b32 v{T+2}, 31, v{V_LANE}\nv_lshlrev_b32 v{T+2}, 7, v{T+2}\ns_lshl_b32 s{S_B0}, s{S_J}, 12\ns_add_u32 s{S_B0}, s{S_B0}, {WS_F2}')
    f2t = flag_load(fr, T+3, T+2, S_B0)
    fr.extend(p2_setup(V_TMP))
    fr.extend(sp0)
    flag_check(fr, f2t, T+3, T+2, S_B0, 's2', S_B0+1)
    stamp(fr, cfg, 's2ok')
    if not cfg.noside2:
        iu = units(init.L); body = kv1.L + kv2.L; nb_ = len(body); di = 0
        for k, ins in enumerate(body):
            fr.L.append(ins)
            tgt = ((k + 1) * len(iu)) // nb_ + 2
            while di < min(tgt, len(iu)) and ins.grp is None and ins.kind != 'mfma':
                fr.extend(iu[di]); di += 1
        for u in iu[di:]: fr.extend(u)
        fr.wait_lgkm(kvw); fr.e('s_barrier'); fr.extend(kv3); fr.extend(kva)
    else:
        fr.extend(init)
    stamp(fr, cfg, 'kvdone')
    W.at(fr, P2_0, front=True)
    if not cfg.noside2:
        W.fill(pqp, P2_0 + 1, P2_0 + 22)
        W.fill(z1e, P2_0 + 22, P2_0 + cfg.z1end)
        ck = Prog()
        ck.e(f'v_and_b32 v{T}, 31, v{V_LANE}\nv_lshlrev_b32 v{T}, 7, v{T}\ns_lshl_b32 s{S_B0+2}, s{S_J}, 12\ns_add_u32 s{S_B0+2}, s{S_B0+2}, {WS_FK}')
        fkt = flag_load(ck, T+1, T, S_B0+2)
        W.fill(ck, P2_0 + cfg.kchk, P2_0 + cfg.kchk + 1)
        ck2 = Prog(); flag_check(ck2, fkt, T+1, T, S_B0+2, 'fk', S_B0+3)
        W.fill(ck2, P2_0 + cfg.kchk + 8, P2_0 + cfg.kchk + 9)
        W.fill(oi, P2_0 + cfg.kchk + 9, P2_0 + cfg.kchk + 11)
        W.fill(oc1, P2_0 + cfg.kchk + 19, P2_0 + cfg.kchk + 22)
        W.fill(oc2, P2_0 + cfg.kchk + 23, P2_0 + cfg.kchk + 27)
    p3s = p3_setup(V_TMP+10)
    W.fill(p3s, P2_0 + 30, P2_0 + 34)
    late = Prog()
    late.e(f'v_lshlrev_b32 v{V_AOFF}, 4, v{V_LANE}')
    xres = [late.vm(f'buffer_load_dwordx2 {vr(V_XR+2*q,2)}, v{V_OUTOFF}, {srd(SRD_X)}, s{S_OUT} offen offset:{32*q}') for q in range(4)]
    late.e(f'v_and_b32 v{T}, 7, v{V_LANE}\nv_lshlrev_b32 v{T}, 7, v{T}\ns_lshl_b32 s{S_B0}, s{S_I}, 10\ns_add_u32 s{S_B0}, s{S_B0}, {WS_F3}')
    f3t = flag_load(late, T+1, T, S_B0)
    W.fill(late, P2_0 + 108, P2_0 + 111)
    chk3 = Prog(); flag_check(chk3, f3t, T+1, T, S_B0, 's3', S_B0+1)
    W.fill(chk3, P2_0 + 117, P2_0 + 118)
    W.fill(oload, P2_0 + 118, P2_0 + 128, by_units=True)
    W.fill(hs, P2_0 + 112, P2_0 + 116)
    f3 = Prog()
    stamp(f3, cfg, 'p2end')
    f3.extend(he)
    f3.extend(w3_rd_setup(V_TMP + 20, S3_0))
    f3.extend(w0)
    f3.e(f'v_and_b32 v{V_EP}, 31, v{V_LANE}\nv_lshlrev_b32 v{V_EP}, 10, v{V_EP}\ns_mov_b32 s{S_EP}, {WS_F3 + 7*128}')
    ept = flag_load(f3, V_EP+1, V_EP, S_EP)
    stamp(f3, cfg, 'h_issued')
    W.at(f3, P3_0, front=True)
    T = V_TB
    if not cfg.sent:
        pb = Prog(); pb.wait_vm(ht); pb.e('s_barrier'); stamp(pb, cfg, 's4pub'); pb.extend(publish(WS_F4, S_I, 3, S_J))
        W.at(pb, P3_0 + cfg.s4step, front=True)
    c4 = Prog()
    c4.e('s_barrier')
    c4.extend(dmap[LAST])
    stamp(c4, cfg, 's4pre')
    if not cfg.sent:
        c4.e(f'v_and_b32 v{T}, 7, v{V_LANE}\nv_lshlrev_b32 v{T}, 7, v{T}\ns_lshl_b32 s{S_B0}, s{S_I}, 10\ns_add_u32 s{S_B0}, s{S_B0}, {WS_F4}')
        f4t = flag_load(c4, T+1, T, S_B0)
        flag_check(c4, f4t, T+1, T, S_B0, 's4', S_B0+1)
    else:
        c4.extend(h_poll(T))
    c4.wait_vm(dtoks[LAST-2] + dtoks[LAST-1] + dtoks[LAST])
    c4.e('s_barrier')
    stamp(c4, cfg, 's4ok')
    c4.e(f's_mov_b32 s{S_B0+4}, 0')
    c4.e('L_hredo:')
    c4.e(f's_add_u32 s{S_A3}, s{S_H3}, {12*1024}')
    c4.e(f'v_mov_b32 v{V_TB+3}, 0')
    for k2 in range(16, 16 + cfg.hinit): c4.extend(hl[k2])
    c4.extend(w3_rd_setup(V_TMP + 20, S3_0 + 2))
    c4.extend(w16)
    W.at(c4, P3_0 + 16, front=True)
    W.emit(p)
    if cfg.sent:
        p.e(f'v_cmp_eq_u32 vcc, -1, v{V_TB+3}')
        p.e(f's_add_u32 s{S_B0+4}, s{S_B0+4}, 1')
        p.e(f's_cbranch_vccz L_hdone')
        p.e(f's_cmp_lt_u32 s{S_B0+4}, 0x1000\ns_cbranch_scc1 L_hredo')
        p.e('L_hdone:')
    stamp(p, cfg, 'p3main')
    final_epilogue(p, xres)
    p.e(f's_or_b32 s{S_B0}, s2, s{S_W}\ns_cmp_lg_u32 s{S_B0}, 0\ns_cbranch_scc1 L_noep')
    flag_check(p, ept, V_EP+1, V_EP, S_EP, 'ep', S_B0+1)
    p.e(f's_mov_b32 s{S_B0}, 0')
    flag_store(p, S_B0, V_EP)
    p.e('L_noep:')
    p.drain_vm()
    stamp(p, cfg, 'end'); stamp(p, cfg, 'rt1', True)
    stamp_flush(p, cfg)
    return p

V_AOFF = 62

def emit(cfg, path):
    p = build(cfg)
    body = finalize(p, verbose=True)
    hdr = open('cdna_kernels/%s.s.ref' % NAME).read().split('; Override launch')[0]
    txt = hdr + f"""; @launch grid=(256,1,1) block=(256,1,1) lds={LDS_TOTAL}
.amdgcn_target "amdgcn-amd-amdhsa--gfx950"
.text
.globl {NAME}_kernel
.p2align 8
.type {NAME}_kernel,@function
{NAME}_kernel:
{body}
L_end:
    s_endpgm
.section .rodata,"a"
.p2align 6
.amdhsa_kernel {NAME}_kernel
  .amdhsa_next_free_vgpr 512
  .amdhsa_next_free_sgpr 102
  .amdhsa_accum_offset 256
  .amdhsa_group_segment_fixed_size 0
  .amdhsa_kernarg_size 88
  .amdhsa_user_sgpr_count 2
  .amdhsa_user_sgpr_kernarg_segment_ptr 1
  .amdhsa_system_sgpr_workgroup_id_x 1
.end_amdhsa_kernel
"""
    open(path, 'w').write(txt)

if __name__ == '__main__':
    cfg = Cfg()
    for a in sys.argv[2:]:
        if a == 'stamps': cfg.stamps = True
        elif '=' in a:
            k, v = a.split('='); setattr(cfg, k, int(v))
    emit(cfg, sys.argv[1])
    if cfg.stamps: open(sys.argv[1] + '.stamps', 'w').write('\n'.join(STAMPS))
```

```python
import sys, math, struct
sys.path.insert(0, 'dev')
from asmfw import *

NAME = "recurrent_scan__linear_attn_block__mixer_gmlp__prompt"
def f2u(x): return struct.unpack('<I', struct.pack('<f', x))[0]

WS_EPOCH = 0
WS_ZF    = 0x1000
WS_F2    = 0x2000
WS_F3    = 0xA000
WS_F4    = 0x12000
WS_FK    = 0x30000
WS_KV    = 0x20000
WS_ZA    = 0x28000
WS_S1    = 0x40000
WS_Z2N   = 0x100000
WS_ACT   = 0x500000
ACT_T    = 88 * 512
ACT_I    = 4 * ACT_T
WS_SIZE  = 0xB00000
WS_DUMP  = 0x2000000
OOB      = 0x7f000000
SL_X0, SL_X1, SL_C, SL_D, SL_E = 0, 32768, 65536, 98304, 131072
def slot(s): return [SL_C, SL_D, SL_E][s] if s < 3 else [SL_X0, SL_C, SL_D, SL_E][(s - 3) % 4]
LDS_ZT   = SL_X1
LDS_AB   = SL_X1 + 18432
LDS_KVS  = SL_X1 + 19456
LDS_TOTAL = 163840
SRD_X, SRD_QKV, SRD_WIN, SRD_WSP, SRD_WO, SRD_WOUT, SRD_OUT, SRD_WS, SRD_BSP = 8, 12, 16, 20, 24, 28, 32, 36, 40
S_I, S_J, S_W, S_TAG = 44, 45, 46, 47
S_GC1, S_L2E, S_EPS6 = 56, 57, 58
S_MASK16 = 60
S_RH, S_CH = 62, 63
S_H3 = 95
S_EP = 75
V_EP = 56
S_R1, S_R2 = 4, 5
S_KZ, S_KQ, S_W4K, S_Z2B, S_SPB = 64, 68, 72, 73, 74
S_Z2, S_A3, S_OUT, S_ZC = 86, 87, 88, 89
S_D0, S_D1, S_D2 = 92, 93, 94
S_B0 = 96
def srd(n): return f's[{n}:{n+3}]'
V_LANE = 1
V_ZDMA = 2
V_SDMA = 2
V_KDMA = 9
V_W3DMA = 9
V_ZRD, V_KRD = 13, 14
V_RD   = 15
V_GC0  = 17
V_Z2OFF = 18
V_OUTOFF = 19
V_WF   = 20
V_SPRD = 20
V_SPF  = 28
V_W3RD = 20
V_W3F  = 128
V_PQ   = 52
V_BSP  = 60
V_XRD  = 128
V_KVH  = 144
V_ACC0, V_ACC1, V_ACC2 = 64, 96, 128
V_PK   = 160
V_ACCQ = 176
V_Z1P  = 192
V_TMP  = 208
V_GCP  = 240
V_TB   = 246
V_KVH  = 6
KVH    = [6, 7, 8, 62, 63, 236, 237, 244, 245]
V_S3, V_B3, V_XR = 64, 80, 96
def vr(n, k=1): return f'v{n}' if k == 1 else f'v[{n}:{n+k-1}]'
def ar(n, k=1): return f'a{n}' if k == 1 else f'a[{n}:{n+k-1}]'
M32 = 'v_mfma_f32_32x32x16_bf16'
M16 = 'v_mfma_f32_16x16x32_bf16'

class Cfg:
    stop = None
    stamps = False
    zdepth = 24
    bst = 1
    nodma = 0
    noside = 0
    nobar = 0
    nosp = 0
    noz = 0
    zsc1 = 1
    noside2 = 0
    dfrac = 85
    touch = 0
    codebytes = 36000
    z1pk = 1
    s2bar = 11
    s3bar = 20
    kchk = 54
    fkbar = 16
    z2a_end = 46
    z2b_bar = 6
    ab_bar = 9
    s4step = 11
    touch2 = 0
    sent = 1
    ctouch = 0
    mall = 2
    rot = 5
    p0pre = 0
    p0mid = 4
    xst = 0
    sentpos = 0
    sentsc = 1
    hinit = 6
    z1end = 115

STAMPS = []
def stamp(p, cfg, name, real=False):
    if not cfg.stamps: return
    k = len(STAMPS); STAMPS.append(name)
    p.begin_bundle()
    p.e('s_memrealtime s[90:91]' if real else 's_memtime s[90:91]')
    p.e('s_waitcnt lgkmcnt(0)')
    p.e(f'v_writelane_b32 v255, s90, {k}')
    p.end_bundle()
def stamp_flush(p, cfg):
    if not cfg.stamps: return
    p.e(f's_lshl_b32 s48, s2, 2\ns_add_u32 s48, s48, s{S_W}\ns_lshl_b32 s48, s48, 8\ns_add_u32 s48, s48, {WS_DUMP}')
    p.e(f'v_lshlrev_b32 v254, 2, v{V_LANE}')
    p.vm(f'buffer_store_dword v255, v254, {srd(SRD_WS)}, s48 offen')
    p.drain_vm()

uid = [0]
def label(prefix):
    uid[0] += 1
    return f'L_{prefix}_{uid[0]}'

STAGES = ([('Z', 'z2', k) for k in range(4)] + [('KV', 'kv', k) for k in range(4)] + [('Z', 'z1', k) for k in range(4)] +
          [('Q', 'q', k) for k in range(2)] + [('SP', 'sp', k) for k in range(8)] + [('W3', 'wo', k) for k in range(2)] +
          [('W3', 'wout', k) for k in range(4)])
NP1 = 14

def dma_stage(s, toks):
    p = Prog()
    sl = slot(s); typ, blk, k = STAGES[s]
    tl = toks.setdefault(s, [])
    D0, D1, D2 = S_D0, S_D1, S_D2
    def ld(v, sr, so, off): tl.append(p.vm(f'buffer_load_dwordx4 v{v}, {srd(sr)}, s{so} offen offset:{off} lds'))
    if typ == 'SP':
        p.begin_bundle()
        p.e(f's_xor_b32 s{D0}, s{S_R2}, {k}\ns_lshl_b32 s{D0}, s{D0}, 9\ns_add_u32 s{D0}, s{D0}, s{S_SPB}')
        p.e(f's_add_u32 s{D1}, s{D0}, {32*4096}')
        p.e(f's_lshl_b32 s{D2}, s{S_W4K}, 1\ns_add_u32 m0, s{D2}, {sl}')
        ld(V_SDMA, SRD_WSP, D0, 0); p.end_bundle()
        for g8 in range(1, 8):
            p.begin_bundle()
            if g8 == 4: p.e('s_add_u32 m0, m0, 4096')
            ld(V_SDMA + (g8 & 3), SRD_WSP, D0 if g8 < 4 else D1, (g8 & 3)*1024); p.end_bundle()
    elif typ == 'W3':
        sr = SRD_WO if blk == 'wo' else SRD_WOUT
        nrows = 512 if blk == 'wo' else 896
        for half in range(2):
            row0 = 256*k + 128*half
            if row0 >= nrows: continue
            p.begin_bundle()
            p.e(f's_lshl_b32 s{D0}, s{S_W}, 15\ns_lshl_b32 s{D2}, s{S_J}, 7\ns_add_u32 s{D0}, s{D0}, s{D2}\ns_add_u32 s{D0}, s{D0}, {row0*1024}')
            p.e(f's_lshl_b32 s{D2}, s{S_W}, 12\ns_add_u32 m0, s{D2}, {sl + 16384*half}')
            ld(V_W3DMA, sr, D0, 0); p.end_bundle()
            for u in range(1, 4): ld(V_W3DMA + u, sr, D0, u*1024)
    elif typ == 'Z':
        col = 1792 if blk == 'z2' else 0
        for part in range(2):
            p.begin_bundle()
            p.e(f's_add_u32 s{D0}, s{S_KZ+k}, {col + 128*part}')
            p.e(f's_add_u32 m0, s{S_W4K}, {sl + 16384*part}')
            ld(V_ZDMA, SRD_WIN, D0, 0); p.end_bundle()
            for u in range(1, 4): ld(V_ZDMA + u, SRD_WIN, D0, u*1024)
    else:
        parts = [(k, 1024, 0), (k, 2048, 16384)] if typ == 'KV' else [(2*k, 0, 0), (2*k + 1, 0, 16384)]
        for gq, col, lo in parts:
            p.begin_bundle()
            p.e(f's_add_u32 s{D0}, s{S_KQ+gq}, {col}')
            p.e(f's_add_u32 m0, s{S_W4K}, {sl + lo}')
            ld(V_KDMA, SRD_QKV, D0, 0); p.end_bundle()
            for u in range(1, 4): ld(V_KDMA + u, SRD_QKV, D0, u*1024)
    return p

def gelu(p, r0, n, tmp, g=4):
    for c in range(0, n, g):
        xs = [r0+c+k for k in range(g)]
        t = [tmp+k for k in range(g)]
        for k in range(g): p.e(f'v_mul_f32 v{t[k]}, v{xs[k]}, v{xs[k]}')
        for k in range(g): p.e(f'v_fma_f32 v{t[k]}, v{t[k]}, s{S_GC1}, v{V_GC0}')
        for k in range(g): p.e(f'v_mul_f32 v{t[k]}, v{xs[k]}, v{t[k]}')
        for k in range(g): p.e(f'v_exp_f32 v{t[k]}, v{t[k]}')
        for k in range(g): p.e(f'v_add_f32 v{t[k]}, 1.0, v{t[k]}')
        for k in range(g): p.e(f'v_rcp_f32 v{t[k]}, v{t[k]}')
        for k in range(g): p.e(f'v_mul_f32 v{xs[k]}, v{xs[k]}, v{t[k]}')
def phi(p, r0, n, tmp, g=4):
    for c in range(0, n, g):
        xs = [r0+c+k for k in range(g)]
        t = [tmp+k for k in range(g)]
        for k in range(g): p.e(f'v_mul_f32 v{t[k]}, s{S_L2E}, v{xs[k]}')
        for k in range(g): p.e(f'v_min_f32 v{t[k]}, 0, v{t[k]}')
        for k in range(g): p.e(f'v_exp_f32 v{t[k]}, v{t[k]}')
        for k in range(g): p.e(f'v_max_f32 v{xs[k]}, 0, v{xs[k]}')
        for k in range(g): p.e(f'v_add_f32 v{xs[k]}, s{S_EPS6}, v{xs[k]}')
        for k in range(g): p.e(f'v_add_f32 v{xs[k]}, v{xs[k]}, v{t[k]}')
def gelu_pk(p, r0, n, tmp):
    for c in range(0, n, 8):
        xs = [r0+c+2*k for k in range(4)]; t = [tmp+2*k for k in range(4)]
        for k in range(4): p.e(f'v_pk_mul_f32 {vr(t[k],2)}, {vr(xs[k],2)}, {vr(xs[k],2)}')
        for k in range(4): p.e(f'v_pk_fma_f32 {vr(t[k],2)}, {vr(t[k],2)}, {vr(V_GCP,2)}, {vr(V_GCP,2)} op_sel:[0,0,1] op_sel_hi:[1,0,1]')
        for k in range(4): p.e(f'v_pk_mul_f32 {vr(t[k],2)}, {vr(xs[k],2)}, {vr(t[k],2)}')
        for k in range(8): p.e(f'v_exp_f32 v{tmp+k}, v{tmp+k}')
        for k in range(4): p.e(f'v_pk_add_f32 {vr(t[k],2)}, {vr(t[k],2)}, {vr(V_GCP+2,2)}')
        for k in range(8): p.e(f'v_rcp_f32 v{tmp+k}, v{tmp+k}')
        for k in range(4): p.e(f'v_pk_mul_f32 {vr(xs[k],2)}, {vr(xs[k],2)}, {vr(t[k],2)}')
def pack(p, dst, src, n):
    for k in range(0, n, 2): p.e(f'v_cvt_pk_bf16_f32 v{dst + k//2}, v{src+k}, v{src+k+1}')
def pi_rho(p, dst, src, t):
    p.e(f'v_and_b32 v{dst}, 0x13, v{src}\nv_bfe_u32 v{t}, v{src}, 2, 1\nv_lshl_or_b32 v{dst}, v{t}, 3, v{dst}\nv_bfe_u32 v{t}, v{src}, 3, 1\nv_lshl_or_b32 v{dst}, v{t}, 2, v{dst}')
def allreduce_rows(p, vals, tmp):
    for swap in ('v_permlane16_swap_b32', 'v_permlane32_swap_b32'):
        for k, v in enumerate(vals): p.e(f'v_mov_b32 v{tmp+k}, v{v}')
        for k, v in enumerate(vals): p.e(f'{swap} v{v}, v{tmp+k}')
        for k, v in enumerate(vals): p.e(f'v_add_f32 v{v}, v{v}, v{tmp+k}')

def flag_store(p, soff, vt):
    p.begin_bundle()
    p.e(f'v_mov_b32 v{vt}, s{S_TAG}\nv_mov_b32 v{vt+1}, 0')
    p.e('s_mov_b64 exec, 1')
    t = p.vm(f'buffer_store_dword v{vt}, v{vt+1}, {srd(SRD_WS)}, s{soff} offen sc1')
    p.e('s_mov_b64 exec, -1')
    p.end_bundle()
    return t

def flag_load(p, vdst, voff, soff):
    return p.vm(f'buffer_load_dword v{vdst}, v{voff}, {srd(SRD_WS)}, s{soff} offen sc1')

def flag_check(p, tok, vdst, voff, soff, name, cnt):
    l0, l1 = label(name), label(name + 'ok')
    p.wait_vm(tok)
    p.begin_bundle()
    p.e(f'v_cmp_ne_u32 vcc, s{S_TAG}, v{vdst}')
    p.e(f's_mov_b32 s{cnt}, 0')
    p.e(f's_cbranch_vccz {l1}')
    p.e(f'{l0}:')
    p.e_nomodel(f's_sleep 2')
    p.vm_nomodel(f'buffer_load_dword v{vdst}, v{voff}, {srd(SRD_WS)}, s{soff} offen sc1')
    p.e_nomodel('s_waitcnt vmcnt(0)')
    p.e(f'v_cmp_ne_u32 vcc, s{S_TAG}, v{vdst}')
    p.e(f's_add_u32 s{cnt}, s{cnt}, 1')
    p.e(f's_cbranch_vccz {l1}')
    p.e(f's_cmp_lt_u32 s{cnt}, 0x40000')
    p.e(f's_cbranch_scc1 {l0}')
    p.e(f'{l1}:')
    p.end_bundle()

def prologue(p, cfg):
    p.e('s_load_dwordx16 s[64:79], s[0:1], 0\ns_load_dwordx4 s[80:83], s[0:1], 64\ns_load_dwordx2 s[84:85], s[0:1], 80')
    p.e(f'v_and_b32 v{V_LANE}, 63, v0\nv_lshrrev_b32 v2, 6, v0')
    p.e(f'v_readfirstlane_b32 s{S_W}, v2')
    p.e(f's_and_b32 s48, s2, 7\ns_lshr_b32 s49, s2, 3')
    p.e(f's_lshr_b32 s{S_I}, s48, 1\ns_lshl_b32 s{S_I}, s{S_I}, 3\ns_and_b32 s50, s49, 7\ns_add_u32 s{S_I}, s{S_I}, s50')
    p.e(f's_and_b32 s{S_J}, s48, 1\ns_lshl_b32 s{S_J}, s{S_J}, 2\ns_lshr_b32 s50, s49, 3\ns_add_u32 s{S_J}, s{S_J}, s50')
    p.e(f's_and_b32 s{S_RH}, s{S_W}, 1\ns_lshr_b32 s{S_CH}, s{S_W}, 1')
    p.e(f's_lshl_b32 s{S_ZC}, s{S_J}, 8\ns_cmp_eq_u32 s{S_J}, 7\ns_cselect_b32 s{S_ZC}, {OOB:#x}, s{S_ZC}')
    p.e(f's_mov_b32 s{S_GC1}, {f2u(-0.1029432395800235):#x}\ns_mov_b32 s{S_L2E}, {f2u(math.log2(math.e)):#x}\ns_mov_b32 s{S_EPS6}, {f2u(1e-6):#x}')
    p.e(f's_mov_b32 s{S_MASK16}, 0xffff0000\ns_mov_b32 s{S_MASK16+1}, 0xffff0000')
    p.e(f'v_mov_b32 v{V_GC0}, {f2u(-2.302208198144325):#x}')
    T = V_TMP
    p.e(f'v_lshrrev_b32 v{T+1}, 3, v{V_LANE}\nv_and_b32 v{T+2}, 7, v{V_LANE}')
    p.e(f'v_lshlrev_b32 v{T}, 10, v{T+1}\nv_lshl_add_u32 v{T}, v{T+2}, 4, v{T}')
    rot = cfg.rot
    p.e(f's_and_b32 s{S_R1}, s{S_I}, {3 if rot & 1 else 0}')
    p.e(f's_and_b32 s{S_R2}, s{S_J}, 3\ns_lshl_b32 s{S_R2}, s{S_R2}, 1\ns_and_b32 s6, s{S_I}, 7\ns_xor_b32 s{S_R2}, s{S_R2}, s6\ns_and_b32 s{S_R2}, s{S_R2}, {7 if rot & 2 else 0}')
    p.e(f's_and_b32 s6, s{S_J}, {3 if rot & 4 else 0}')
    p.e(f's_lshl_b32 s48, s{S_I}, 16\ns_lshl_b32 s49, s{S_W}, 14\ns_add_u32 s7, s48, s49')
    for c in range(4):
        p.e(f's_xor_b32 s{48+c}, s6, {c}\ns_lshl_b32 s{48+c}, s{48+c}, 8\ns_add_u32 s{48+c}, s{48+c}, s7\ns_add_u32 s{52+c}, s{48+c}, 8192')
    p.drain_lgkm()
    stamp(p, cfg, 'karg')
    wsz = WS_SIZE if not (cfg.stop or cfg.stamps) else 0x4000000
    def mk(s, ptr, size): p.e(f's_mov_b32 s{s}, s{ptr}\ns_and_b32 s{s+1}, s{ptr+1}, 0xffff\ns_mov_b32 s{s+2}, {size:#x}\ns_mov_b32 s{s+3}, 0x20000')
    mk(SRD_X, 64, 2048*1024)
    XB = 144
    xt = []
    for hh in range(2):
        for seg in range(8):
            r = XB + (hh*8+seg)*4
            xt.append(p.vm(f'buffer_load_dwordx4 {vr(r,4)}, v{T}, {srd(SRD_X)}, s{48 + 4*hh + (seg >> 1)} offen offset:{(seg & 1)*128}'))
    for s, ptr, size in ((SRD_WIN, 72, 512*3584), (SRD_WS, 84, wsz), (SRD_QKV, 66, 512*3072), (SRD_WO, 68, 512*1024),
                         (SRD_WSP, 74, 2048*4096), (SRD_BSP, 76, 4096), (SRD_WOUT, 78, 896*1024), (SRD_OUT, 80, 2048*1024)):
        mk(s, ptr, size)
    p.e(f's_lshl_b32 s50, s{S_W}, 14\nv_xor_b32 v{T+2}, v{T+2}, v{T+1}\nv_lshlrev_b32 v{T+3}, 10, v{T+1}\nv_lshl_add_u32 v{T+3}, v{T+2}, 4, v{T+3}\nv_add_u32 v{T+3}, s50, v{T+3}')
    for c in range(4):
        p.e(f's_xor_b32 s51, s6, {c}\ns_lshl_b32 s51, s51, 8\nv_add_u32 v{104+c}, s51, v{T+3}')
    for gq in range(4):
        p.e(f's_xor_b32 s51, s{S_R1}, {gq}\ns_lshl_b32 s51, s51, 7\ns_lshl_b32 s52, s{S_W}, 5\ns_add_u32 s51, s51, s52')
        p.e(f's_mul_i32 s{S_KZ+gq}, s51, 3584\ns_add_u32 s{S_KZ+gq}, s{S_KZ+gq}, s{S_ZC}')
        p.e(f's_mul_i32 s{S_KQ+gq}, s51, 3072\ns_lshl_b32 s52, s{S_J}, 7\ns_add_u32 s{S_KQ+gq}, s{S_KQ+gq}, s52')
    p.e(f's_lshl_b32 s{S_W4K}, s{S_W}, 12')
    p.e(f's_lshl_b32 s{S_SPB}, s{S_I}, 18\ns_lshl_b32 s51, s{S_W}, 7\ns_add_u32 s{S_SPB}, s{S_SPB}, s51\ns_cmp_eq_u32 s{S_J}, 7\ns_cselect_b32 s{S_SPB}, {OOB:#x}, s{S_SPB}')
    return xt, XB, T+3

def mall_prefetch(p, cfg, part=3):
    lab = label('mp'); L = V_LANE; A = 102 if part & 1 else V_TMP + 36
    p.begin_bundle()
    p.e(f's_cmp_lg_u32 s{S_J}, 7\ns_cbranch_scc1 {lab}')
    p.e(f'v_lshrrev_b32 v{A}, 5, v{L}\nv_lshlrev_b32 v{A}, 12, v{A}\nv_and_b32 v{A+1}, 31, v{L}\nv_lshl_add_u32 v{A}, v{A+1}, 7, v{A}')
    p.e(f's_lshl_b32 s52, s{S_I}, 18\ns_lshl_b32 s53, s{S_W}, 16\ns_add_u32 s52, s52, s53')
    for k in range(8 if part & 1 else 0):
        p.vm_nomodel(f'buffer_load_dword v0, v{A}, {srd(SRD_WSP)}, s52 offen')
        p.e(f's_add_u32 s52, s52, 8192')
    p.e(f'v_lshrrev_b32 v{A}, 3, v{L}\nv_lshlrev_b32 v{A}, 10, v{A}\nv_and_b32 v{A+1}, 7, v{L}\nv_lshl_add_u32 v{A}, v{A+1}, 7, v{A}')
    p.e(f's_lshl_b32 s52, s{S_I}, 2\ns_add_u32 s52, s52, s{S_W}\ns_lshl_b32 s52, s52, 13')
    if part & 2:
        p.vm_nomodel(f'buffer_load_dword v0, v{A}, {srd(SRD_WOUT)}, s52 offen')
        p.vm_nomodel(f'buffer_load_dword v0, v{A}, {srd(SRD_WO)}, s52 offen')
    p.e(f'{lab}:')
    p.end_bundle()

def z_addr_setup(p, T):
    L = V_LANE; t0, t1, t2 = T, T+1, T+2
    p.e(f'v_lshrrev_b32 v{t0}, 3, v{L}\nv_and_b32 v{t1}, 7, v{L}')
    p.e(f'v_bfe_u32 v{t2}, v{L}, 4, 1\nv_lshlrev_b32 v{t2}, 2, v{t2}\nv_xor_b32 v{t1}, v{t1}, v{t2}')
    p.e(f'v_mul_u32_u24 v{t2}, 3584, v{t0}\nv_lshl_add_u32 v{V_ZDMA}, v{t1}, 4, v{t2}')
    for u in range(1, 4): p.e(f'v_add_u32 v{V_ZDMA+u}, {u*8*3584 - u*1024}, v{V_ZDMA}')
    p.e(f'v_mul_u32_u24 v{t2}, 3072, v{t0}\nv_lshl_add_u32 v{V_KDMA}, v{t1}, 4, v{t2}')
    for u in range(1, 4): p.e(f'v_add_u32 v{V_KDMA+u}, {u*8*3072 - u*1024}, v{V_KDMA}')

def k_addr_setup(p, T):
    L = V_LANE; t0, t1, t2, t3, t4 = T, T+1, T+2, T+3, T+4
    p.e(f'v_lshrrev_b32 v{t0}, 5, v{L}\nv_bfe_u32 v{t1}, v{L}, 2, 2')
    p.e(f'v_bfe_u32 v{t3}, v{L}, 4, 1\nv_and_b32 v{t4}, 3, v{L}')
    p.e(f'v_lshl_add_u32 v{t2}, v{t0}, 3, v{t1}\nv_lshlrev_b32 v{t2}, 7, v{t2}')
    p.e(f'v_lshl_add_u32 v{t2}, v{t3}, 5, v{t2}\nv_lshl_add_u32 v{t2}, v{t4}, 3, v{t2}')
    p.e(f'v_lshrrev_b32 v{t1}, 1, v{t1}')
    p.e(f'v_xor_b32 v{t3}, s{S_CH}, v{t1}\nv_lshl_add_u32 v{V_KRD}, v{t3}, 6, v{t2}')
    p.e(f'v_xor_b32 v{t3}, s{S_RH}, v{t1}\nv_lshl_add_u32 v{V_ZRD}, v{t3}, 6, v{t2}\ns_lshl_b32 s52, s{S_CH}, 14\nv_add_u32 v{V_ZRD}, s52, v{V_ZRD}')
    pi_rho(p, t0, L, t1)
    p.e(f'v_and_b32 v{t1}, 15, v{t0}\nv_lshrrev_b32 v{t2}, 5, v{L}\nv_xor_b32 v{t1}, v{t1}, v{t2}\nv_lshlrev_b32 v{t0}, 10, v{t0}')
    p.e(f's_lshl_b32 s52, s{S_RH}, 15\ns_lshl_b32 s53, s{S_R1}, 8\ns_add_u32 s52, s52, s53\ns_xor_b32 s53, s52, 32768')
    for beta in range(8):
        p.e(f'v_xor_b32 v{t2}, {2*beta}, v{t1}\nv_lshl_add_u32 v{t2}, v{t2}, 4, v{t0}')
        p.e(f'v_add_u32 v{V_XRD+beta}, s52, v{t2}\nv_add_u32 v{V_XRD+8+beta}, s53, v{t2}')

def epoch_zero(p, T):
    p.e(f'v_mov_b32 v{T}, 0')
    et = p.vm(f'buffer_load_dword v{T+1}, v{T}, {srd(SRD_WS)}, 0 offen sc1')
    for k in range(4): p.e(f'v_mov_b32 v{T+2+k}, 0')
    p.e(f's_lshl_b32 s52, s{S_J}, 12\ns_lshl_b32 s53, s{S_W}, 10\ns_add_u32 s52, s52, s53\ns_add_u32 s52, s52, {WS_KV}')
    p.e(f's_cmp_eq_u32 s{S_I}, 0\ns_cselect_b32 s52, s52, {OOB:#x}')
    p.e(f'v_lshlrev_b32 v{T+6}, 4, v{V_LANE}')
    z1 = p.vm(f'buffer_store_dwordx4 {vr(T+2,4)}, v{T+6}, {srd(SRD_WS)}, s52 offen sc1')
    p.e(f's_lshl_b32 s53, s{S_J}, 8\ns_add_u32 s53, s53, {WS_ZA}')
    p.e(f's_or_b32 s54, s{S_I}, s{S_W}\ns_cmp_eq_u32 s54, 0\ns_cselect_b32 s53, s53, {OOB:#x}')
    p.begin_bundle()
    p.e('s_mov_b64 exec, 0xffff')
    z2 = p.vm(f'buffer_store_dwordx4 {vr(T+2,4)}, v{T+6}, {srd(SRD_WS)}, s53 offen sc1')
    p.e('s_mov_b64 exec, -1')
    p.end_bundle()
    return et, [z1, z2]

def epoch_finish(p, et, zt, T):
    p.wait_vm([et] + zt)
    p.e(f'v_readfirstlane_b32 s{S_TAG}, v{T+1}')
    p.e(f's_mul_i32 s{S_TAG}, s{S_TAG}, 1664525\ns_add_u32 s{S_TAG}, s{S_TAG}, 1013904223')
    p.e(f's_lshl_b32 s52, s{S_J}, 9\ns_lshl_b32 s53, s{S_W}, 7\ns_add_u32 s52, s52, s53\ns_add_u32 s52, s52, {WS_ZF}')
    p.e(f's_cmp_eq_u32 s{S_I}, 0\ns_cselect_b32 s52, s52, {OOB:#x}')
    flag_store(p, 52, T)

def p0_stats(p, xt, XB, T):
    ones = T
    S = [T+2, T+3, T+4, T+5]; Q = [T+6, T+7, T+8, T+9]
    p.e(f'v_mov_b32 v{ones}, 0x3f803f80')
    for r in S + Q: p.e(f'v_mov_b32 v{r}, 0')
    for hh in range(2):
        for seg in range(8):
            p.wait_vm(xt[hh*8+seg])
            r = XB + (hh*8+seg)*4
            for d in range(4):
                c = hh*2 + (d & 1)
                p.e(f'v_dot2_f32_bf16 v{S[c]}, v{r+d}, v{ones}, v{S[c]}')
                p.e(f'v_dot2_f32_bf16 v{Q[c]}, v{r+d}, v{r+d}, v{Q[c]}')
    for hh in range(2):
        p.e(f'v_add_f32 v{S[2*hh]}, v{S[2*hh]}, v{S[2*hh+1]}\nv_add_f32 v{Q[2*hh]}, v{Q[2*hh]}, v{Q[2*hh+1]}')
    vals = [S[0], Q[0], S[2], Q[2]]
    for dpp in ('quad_perm:[1,0,3,2]', 'quad_perm:[2,3,0,1]', 'row_half_mirror'):
        for v in vals: p.e(f'v_add_f32_dpp v{v}, v{v}, v{v} {dpp} row_mask:0xf bank_mask:0xf')
    AB = [T+10, T+12]
    for hh in range(2):
        s_, q_, a = S[2*hh], Q[2*hh], AB[hh]
        p.e(f'v_mul_f32 v{s_}, {f2u(1/512):#x}, v{s_}\nv_mul_f32 v{q_}, {f2u(1/512):#x}, v{q_}')
    for hh in range(2):
        s_, q_, a = S[2*hh], Q[2*hh], AB[hh]
        p.e(f'v_fma_f32 v{q_}, -v{s_}, v{s_}, v{q_}')
    for hh in range(2):
        q_ = Q[2*hh]
        p.e(f'v_max_f32 v{q_}, 0, v{q_}\nv_add_f32 v{q_}, {f2u(1e-5):#x}, v{q_}')
    for hh in range(2): p.e(f'v_rsq_f32 v{AB[hh]}, v{Q[2*hh]}')
    for hh in range(2):
        s_, a = S[2*hh], AB[hh]
        p.e(f'v_mul_f32 v{a+1}, -v{s_}, v{a}')
    return AB

def p0_norm(p, XB, T, AB, vwb):
    T2 = [T+14, T+16, T+18, T+20]
    n = 0
    for hh in range(2):
        a = AB[hh]
        for seg in range(8):
            r = XB + (hh*8+seg)*4
            ts = [T2[d] for d in range(4)]
            for d in range(4): p.e(f'v_lshlrev_b32 v{ts[d]}, 16, v{r+d}\nv_and_b32 v{ts[d]+1}, 0xffff0000, v{r+d}')
            for d in range(4): p.e(f'v_pk_fma_f32 {vr(ts[d],2)}, {vr(ts[d],2)}, {vr(a,2)}, {vr(a,2)} op_sel:[0,0,1] op_sel_hi:[1,0,1]')
            for d in range(4): p.e(f'v_cvt_pk_bf16_f32 v{r+d}, v{ts[d]}, v{ts[d]+1}')
            p.ds(f'ds_write_b128 v{104 + (seg >> 1)}, {vr(r,4)} offset:{hh*8192 + ((seg & 1) ^ hh)*128}')

def touches(T):
    p = Prog(); L = V_LANE; A, D = T, T+1
    B = S_B0
    p.e(f's_lshr_b32 s{B}, s2, 3\ns_and_b32 s{B+1}, s2, 1\ns_lshl_b32 s{B+1}, s{B+1}, 2')
    p.e(f'v_lshrrev_b32 v{A}, 3, v{L}\nv_lshlrev_b32 v{A}, 12, v{A}\nv_and_b32 v{D}, 7, v{L}\nv_lshl_add_u32 v{A}, v{D}, 7, v{A}')
    p.e(f's_lshl_b32 s{B+2}, s{S_I}, 18\ns_lshl_b32 s{B+3}, s{S_W}, 16\ns_add_u32 s{B+2}, s{B+2}, s{B+3}\ns_lshr_b32 s{B+3}, s{B}, 3\ns_lshl_b32 s{B+3}, s{B+3}, 10\ns_add_u32 s{B+2}, s{B+2}, s{B+3}')
    sp = [f'buffer_load_dword v0, v{A}, {srd(SRD_WSP)}, s{B+2} offen', f's_add_u32 s{B+2}, s{B+2}, {8*4096}', f'buffer_load_dword v0, v{A}, {srd(SRD_WSP)}, s{B+2} offen']
    return p, sp

def touch_weights(T):
    p = Prog(); L = V_LANE; A, D = T, T+1
    B = S_B0
    p.e(f's_lshr_b32 s{B}, s2, 3\ns_and_b32 s{B+1}, s2, 1')
    p.e(f's_lshl_b32 s{B+2}, s{B}, 4\ns_lshl_b32 s{B+3}, s{S_W}, 2\ns_add_u32 s{B+2}, s{B+2}, s{B+3}')
    p.e(f'v_lshrrev_b32 v{A}, 4, v{L}\nv_mul_u32_u24 v{A}, 3584, v{A}\nv_and_b32 v{D}, 7, v{L}\nv_lshl_add_u32 v{A}, v{D}, 7, v{A}')
    p.e(f'v_bfe_u32 v{D}, v{L}, 3, 1\nv_mul_u32_u24 v{D}, 1792, v{D}\nv_add_u32 v{A}, v{A}, v{D}')
    p.e(f's_mul_i32 s{B+3}, s{B+2}, 3584\ns_lshl_b32 s{B+4}, s{B+1}, 10\ns_add_u32 s{B+3}, s{B+3}, s{B+4}')
    p.vm(f'buffer_load_dword v0, v{A}, {srd(SRD_WIN)}, s{B+3} offen')
    p.e(f'v_lshrrev_b32 v{A}, 4, v{L}\nv_mul_u32_u24 v{A}, 3072, v{A}\nv_and_b32 v{D}, 3, v{L}\nv_lshl_add_u32 v{A}, v{D}, 7, v{A}')
    p.e(f'v_bfe_u32 v{D}, v{L}, 2, 2\nv_min_u32 v{D}, 2, v{D}\nv_lshl_add_u32 v{A}, v{D}, 10, v{A}')
    p.e(f's_mul_i32 s{B+3}, s{B+2}, 3072\ns_lshl_b32 s{B+4}, s{B+1}, 9\ns_add_u32 s{B+3}, s{B+3}, s{B+4}')
    p.vm(f'buffer_load_dword v0, v{A}, {srd(SRD_QKV)}, s{B+3} offen')
    return p

def touch_w3(T):
    p = Prog(); L = V_LANE; A, D = T, T+1
    B = S_B0
    p.e(f's_lshr_b32 s{B}, s2, 3\ns_and_b32 s{B+1}, s2, 1\ns_lshl_b32 s{B}, s{B}, 2\ns_add_u32 s{B}, s{B}, s{S_W}\ns_lshl_b32 s{B}, s{B}, 14')
    p.e(f'v_lshrrev_b32 v{A}, 2, v{L}\nv_lshlrev_b32 v{A}, 10, v{A}\nv_and_b32 v{D}, 3, v{L}\nv_lshl_add_u32 v{A}, v{D}, 7, v{A}')
    p.e(f's_lshl_b32 s{B+1}, s{B+1}, 9\ns_add_u32 s{B}, s{B}, s{B+1}')
    p.vm(f'buffer_load_dword v0, v{A}, {srd(SRD_WOUT)}, s{B} offen')
    p.vm(f'buffer_load_dword v0, v{A}, {srd(SRD_WO)}, s{B} offen')
    return p

def code_touch(T, nbytes):
    p = Prog(); L = V_LANE
    n = (nbytes + 8191) // 8192
    lab = label('ct')
    p.begin_bundle()
    p.e(f's_lshr_b32 s{S_B0}, s2, 3\ns_lshl_b32 s{S_B0+1}, s{S_W}, 5\ns_add_u32 s{S_B0}, s{S_B0}, s{S_B0+1}\ns_cmp_ge_u32 s{S_B0}, {n}\ns_cbranch_scc1 {lab}')
    p.e(f's_getpc_b64 s[{S_B0+2}:{S_B0+3}]')
    p.e(f's_lshl_b32 s{S_B0}, s{S_B0}, 13')
    p.e(f'v_lshlrev_b32 v{T}, 7, v{L}\nv_add_u32 v{T}, s{S_B0}, v{T}\nv_min_u32 v{T}, {nbytes - 128}, v{T}')
    p.vm_nomodel(f'global_load_dword v0, v{T}, s[{S_B0+2}:{S_B0+3}]')
    p.e(f'{lab}:')
    p.end_bundle()
    return p

def e_z2a():
    p = Prog(); p.comment('E_z2a: gelu(z2), pack, Z^T -> LDS')
    T = V_TMP; L = V_LANE
    p.e(f'v_and_b32 v{T+8}, 31, v{L}\ns_lshl_b32 s48, s{S_W}, 5\nv_add_u32 v{T+8}, s48, v{T+8}\nv_mul_u32_u24 v{T+8}, 144, v{T+8}')
    p.e(f'v_lshrrev_b32 v{T+9}, 5, v{L}\nv_lshl_add_u32 v{T+8}, v{T+9}, 4, v{T+8}')
    p.e(f's_lshl_b32 s48, s{S_RH}, 6\ns_add_u32 s49, s48, {LDS_ZT}\ns_sub_u32 s50, {LDS_ZT + 64}, s48')
    p.e(f'v_add_u32 v{T+9}, s49, v{T+8}\nv_add_u32 v{T+10}, s50, v{T+8}')
    wt = []
    for X in range(2):
        for c in range(2):
            r0 = V_ACC0 + 16*X + 8*c
            gelu(p, r0, 8, T)
            pack(p, V_PK + 8*X + 4*c, r0, 8)
            wt.append(p.ds(f'ds_write_b128 v{T+9+X}, {vr(V_PK+8*X+4*c,4)} offset:{32*c}'))
    return p, wt

def e_z2b():
    p = Prog(); p.comment('E_z2b: row stats, publish')
    T = V_TMP; L = V_LANE
    p.e(f'v_lshrrev_b32 v{T}, 2, v{L}\nv_mul_u32_u24 v{T}, 144, v{T}')
    p.e(f'v_and_b32 v{T+1}, 3, v{L}\nv_lshl_add_u32 v{T}, v{T+1}, 3, v{T}')
    p.e(f's_lshl_b32 s48, s{S_W}, 5\ns_add_u32 s48, s48, {LDS_ZT}\nv_add_u32 v{T}, s48, v{T}')
    D = V_PK
    tk = [p.ds(f'ds_read_b64_tr_b16 {vr(D+2*k,2)}, v{T} offset:{2304*k}') for k in range(8)]
    S, Q, ones = T+2, T+3, T+6
    p.e(f'v_mov_b32 v{ones}, 0x3f803f80\nv_mov_b32 v{S}, 0\nv_mov_b32 v{Q}, 0\nv_mov_b32 v{T+7}, 0\nv_mov_b32 v{T+8}, 0')
    p.e(f's_lshl_b32 s48, s{S_I}, 3\ns_add_u32 s48, s48, s{S_J}\ns_lshl_b32 s48, s48, 10\ns_lshl_b32 s49, s{S_W}, 8\ns_add_u32 s48, s48, s49\ns_add_u32 s48, s48, {WS_S1}')
    p.e(f'v_lshlrev_b32 v{T+11}, 4, v{L}')
    p.begin_bundle()
    p.wait_lgkm(tk)
    for k in range(8):
        p.e(f'v_dot2_f32_bf16 v{S}, v{D+2*k}, v{ones}, v{S}\nv_dot2_f32_bf16 v{Q}, v{D+2*k}, v{D+2*k}, v{Q}')
        p.e(f'v_dot2_f32_bf16 v{T+7}, v{D+2*k+1}, v{ones}, v{T+7}\nv_dot2_f32_bf16 v{T+8}, v{D+2*k+1}, v{D+2*k+1}, v{T+8}')
    p.end_bundle()
    p.e(f'v_mov_b32 v{T+4}, s{S_TAG}\nv_mov_b32 v{T+5}, s{S_TAG}')
    p.e(f'v_add_f32 v{S}, v{S}, v{T+7}\nv_add_f32 v{Q}, v{Q}, v{T+8}')
    allreduce_rows(p, [S, Q], T+9)
    p.begin_bundle()
    p.e('s_mov_b64 exec, 0xffff')
    p.vm(f'buffer_store_dwordx4 {vr(S,4)}, v{T+11}, {srd(SRD_WS)}, s48 offen sc1')
    p.e('s_mov_b64 exec, -1')
    p.end_bundle()
    return p

V_G = 236
def s1_issue():
    p = Prog(); p.comment('S1 gather issue')
    L = V_LANE; A = 244
    p.e(f'v_and_b32 v{A}, 15, v{L}\nv_lshlrev_b32 v{A}, 4, v{A}\nv_lshrrev_b32 v{A+1}, 4, v{L}\nv_lshl_add_u32 v{A}, v{A+1}, 11, v{A}')
    p.e(f's_lshl_b32 s{S_B0}, s{S_I}, 13\ns_lshl_b32 s{S_B0+1}, s{S_W}, 8\ns_add_u32 s{S_B0}, s{S_B0}, s{S_B0+1}\ns_add_u32 s{S_B0}, s{S_B0}, {WS_S1}')
    t0 = p.vm(f'buffer_load_dwordx4 {vr(V_G,4)}, v{A}, {srd(SRD_WS)}, s{S_B0} offen sc1')
    t1 = p.vm(f'buffer_load_dwordx4 {vr(V_G+4,4)}, v{A}, {srd(SRD_WS)}, s{S_B0} offen offset:1024 sc1')
    return p, [t0, t1]

def s1_finish(gt):
    p = Prog(); p.comment('S1 gather finish')
    L = V_LANE; A = 244; G0, G1 = V_G, V_G+4
    l0, l1 = label('s1'), label('s1ok')
    B1, B2 = S_B0+2, S_B0+4
    def cmp(pp):
        pp(f'v_xor_b32 v{A+1}, s{S_TAG}, v{G0+2}\nv_xor_b32 v{G0+2}, s{S_TAG}, v{G0+3}\nv_or_b32 v{A+1}, v{A+1}, v{G0+2}')
        pp(f'v_xor_b32 v{G0+2}, s{S_TAG}, v{G1+2}\nv_or_b32 v{A+1}, v{A+1}, v{G0+2}\nv_xor_b32 v{G0+2}, s{S_TAG}, v{G1+3}\nv_or_b32 v{A+1}, v{A+1}, v{G0+2}')
        pp(f'v_cmp_ne_u32 vcc, 0, v{A+1}')
    p.wait_vm(gt)
    fix7 = lambda pp: pp(f'v_mov_b32 v{A+1}, s{S_TAG}\ns_mov_b32 exec_lo, 0\ns_mov_b32 exec_hi, 0xffff0000\nv_mov_b32 v{G1}, 0\nv_mov_b32 v{G1+1}, 0\nv_mov_b32 v{G1+2}, s{S_TAG}\nv_mov_b32 v{G1+3}, s{S_TAG}\ns_mov_b64 exec, -1')
    p.begin_bundle()
    fix7(p.e)
    cmp(p.e)
    p.e(f's_mov_b32 s{S_B0+1}, 0')
    p.e(f's_cbranch_vccz {l1}')
    p.e(f'{l0}:')
    p.e_nomodel('s_sleep 2')
    p.vm_nomodel(f'buffer_load_dwordx4 {vr(G0,4)}, v{A}, {srd(SRD_WS)}, s{S_B0} offen sc1')
    p.vm_nomodel(f'buffer_load_dwordx4 {vr(G1,4)}, v{A}, {srd(SRD_WS)}, s{S_B0} offen offset:1024 sc1')
    p.e_nomodel('s_waitcnt vmcnt(0)')
    fix7(p.e)
    cmp(p.e)
    p.e(f's_add_u32 s{S_B0+1}, s{S_B0+1}, 1')
    p.e(f's_cbranch_vccz {l1}')
    p.e(f's_cmp_lt_u32 s{S_B0+1}, 0x40000\ns_cbranch_scc1 {l0}')
    p.e(f'{l1}:')
    p.end_bundle()
    S, Q = G0, G0+1
    p.e(f'v_add_f32 v{S}, v{S}, v{G1}\nv_add_f32 v{Q}, v{Q}, v{G1+1}')
    allreduce_rows(p, [S, Q], G1)
    p.e(f'v_mul_f32 v{S}, {f2u(1/896):#x}, v{S}\nv_mul_f32 v{Q}, {f2u(1/896):#x}, v{Q}')
    p.e(f'v_fma_f32 v{Q}, -v{S}, v{S}, v{Q}\nv_max_f32 v{Q}, 0, v{Q}\nv_add_f32 v{Q}, {f2u(1e-5):#x}, v{Q}')
    p.e(f'v_and_b32 v{A}, 15, v{L}\nv_lshlrev_b32 v{A}, 2, v{A}\ns_lshl_b32 s{S_B0}, s{S_W}, 6\ns_add_u32 s{S_B0}, s{S_B0}, {LDS_AB}')
    p.e(f'v_rsq_f32 v{Q}, v{Q}')
    p.e(f'v_add_u32 v{A}, s{S_B0}, v{A}')
    p.e(f'v_mul_f32 v{S}, -v{S}, v{Q}')
    p.begin_bundle()
    p.e('s_mov_b64 exec, 0xffff')
    w = [p.ds(f'ds_write_b32 v{A}, v{Q}'), p.ds(f'ds_write_b32 v{A}, v{S} offset:256')]
    p.e('s_mov_b64 exec, -1')
    p.end_bundle()
    return p, w

def e_z2c():
    p = Prog(); p.comment('E_z2c: normalise z2, store z2n')
    T = V_TMP; L = V_LANE
    p.e(f'v_lshrrev_b32 v{T}, 5, v{L}\nv_lshlrev_b32 v{T}, 5, v{T}')
    p.e(f's_lshl_b32 s48, s{S_RH}, 7\ns_add_u32 s49, s48, {LDS_AB}\ns_sub_u32 s50, {LDS_AB + 128}, s48')
    p.e(f'v_add_u32 v{T+1}, s49, v{T}\nv_add_u32 v{T+2}, s50, v{T}')
    A_ = [T+8, T+16]; B_ = [T+12+0, T+20]
    Aa, Bb = T+8, T+16
    V = T+3
    p.e(f'v_lshlrev_b32 v{V}, 4, v{L}')
    p.e(f's_lshl_b32 s54, s{S_J}, 19\ns_lshl_b32 s55, s{S_W}, 17\ns_add_u32 s54, s54, s55\ns_lshl_b32 s55, s{S_I}, 12\ns_add_u32 s54, s54, s55\ns_add_u32 s54, s54, {WS_Z2N}')
    p.e(f's_lshl_b32 s55, s{S_RH}, 11\ns_add_u32 s52, s54, s55\ns_sub_u32 s53, s54, s55\ns_add_u32 s53, s53, 2048')
    toks = []
    def reads(X, c):
        return ([p.ds(f'ds_read_b128 {vr(Aa+4*k,4)}, v{T+1+X} offset:{64*c + 16*k}') for k in range(2)] +
                [p.ds(f'ds_read_b128 {vr(Bb+4*k,4)}, v{T+1+X} offset:{256 + 64*c + 16*k}') for k in range(2)])
    for X in range(2):
        for c in range(2):
            rd = reads(X, c)
            r0 = V_ACC0 + 16*X + 8*c
            p.wait_lgkm(rd)
            for k in range(8): p.e(f'v_fma_f32 v{r0+k}, v{r0+k}, v{Aa+k}, v{Bb+k}')
            O = T+24 + 4*((2*X+c) & 1)
            pack(p, O, r0, 8)
            toks.append(p.vm(f'buffer_store_dwordx4 {vr(O,4)}, v{V}, {srd(SRD_WS)}, s{52+X} offen offset:{1024*c} sc1'))
    return p, toks

def zf_issue():
    p = Prog(); L = V_LANE
    p.e(f'v_and_b32 v{V_TB}, 3, v{L}\nv_lshlrev_b32 v{V_TB}, 7, v{V_TB}\ns_lshl_b32 s{S_B0+2}, s{S_J}, 9\ns_add_u32 s{S_B0+2}, s{S_B0+2}, {WS_ZF}')
    t = flag_load(p, V_TB+1, V_TB, S_B0+2)
    return p, t

def e_kv():
    p = Prog(); p.comment('E_kv')
    T = V_TMP; L = V_LANE
    K_, V_ = V_ACC1, V_ACC1+16
    PKk, PKv = V_PK, V_PK+8
    pack(p, PKv, V_, 16)
    phi(p, K_, 16, T)
    pack(p, PKk, K_, 16)
    ones = T+8
    for k in range(4): p.e(f'v_mov_b32 v{ones+k}, 0x3f803f80')
    p.e(f'v_lshlrev_b32 v{T}, 2, v{L}\ns_mul_i32 s52, s{S_W}, 2304\ns_add_u32 s52, s52, {LDS_KVS}\nv_add_u32 v{T}, s52, v{T}')
    p.e(f'{M32} {vr(K_,16)}, {vr(PKk,4)}, {vr(PKv,4)}, 0')
    p.e(f'{M32} {vr(V_,16)}, {vr(ones,4)}, {vr(PKk,4)}, 0')
    p.e(f'{M32} {vr(K_,16)}, {vr(PKk+4,4)}, {vr(PKv+4,4)}, {vr(K_,16)}')
    p.e(f'{M32} {vr(V_,16)}, {vr(ones,4)}, {vr(PKk+4,4)}, {vr(V_,16)}')
    p2 = Prog()
    for i in range(8): p2.e(f'v_cndmask_b32 v{KVH[i]}, v{K_+i}, v{K_+8+i}, s[{S_MASK16}:{S_MASK16+1}]')
    p2.e(f'v_mov_b32 v{KVH[8]}, v{V_}')
    wt = [p2.ds(f'ds_write_b32 v{T}, v{KVH[i]} offset:{256*i}') for i in range(9)]
    p3 = Prog()
    p3.e(f'v_lshlrev_b32 v{T}, 2, v{L}\ns_xor_b32 s52, s{S_W}, 1\ns_mul_i32 s52, s52, 2304\ns_add_u32 s52, s52, {LDS_KVS}\nv_add_u32 v{T}, s52, v{T}')
    rd = [p3.ds(f'ds_read_b32 v{T+1+i}, v{T} offset:{256*i}') for i in range(9)]
    p3.wait_lgkm(rd)
    for i in range(9): p3.e(f'v_add_f32 v{KVH[i]}, v{KVH[i]}, v{T+1+i}')
    return p, p2, wt, p3

def kv_atomics(zft):
    p = Prog(); p.comment('kv atomics (rh == 0 waves)')
    T = V_TB + 4; L = V_LANE
    flag_check(p, zft, V_TB+1, V_TB, S_B0+2, 'zf', S_B0+3)
    p.e(f'v_lshlrev_b32 v{T}, 2, v{L}')
    B = S_B0
    p.e(f's_lshl_b32 s{B}, s{S_J}, 1\ns_add_u32 s{B}, s{B}, s{S_CH}\ns_lshl_b32 s{B+1}, s{B}, 7\ns_add_u32 s{B+1}, s{B+1}, {WS_ZA}\ns_lshl_b32 s{B}, s{B}, 11\ns_add_u32 s{B}, s{B}, {WS_KV}')
    p.e(f's_cmp_eq_u32 s{S_RH}, 0\ns_cselect_b32 s{B}, s{B}, {OOB:#x}\ns_cselect_b32 s{B+1}, s{B+1}, {OOB:#x}')
    toks = []
    for i in range(8): toks.append(p.vm(f'buffer_atomic_add_f32 v{KVH[i]}, v{T}, {srd(SRD_WS)}, s{B} offen offset:{256*i}'))
    p.begin_bundle()
    p.e('s_mov_b32 exec_hi, 0')
    toks.append(p.vm(f'buffer_atomic_add_f32 v{KVH[8]}, v{T}, {srd(SRD_WS)}, s{B+1} offen'))
    p.e('s_mov_b32 exec_hi, -1')
    p.end_bundle()
    return p, toks

def e_z1(packed):
    p = Prog(); p.comment('E_z1')
    if packed:
        p.e(f'v_mov_b32 v{V_GCP}, s{S_GC1}\nv_mov_b32 v{V_GCP+1}, v{V_GC0}\nv_mov_b32 v{V_GCP+2}, 1.0\nv_mov_b32 v{V_GCP+3}, 1.0')
    for c in range(4):
        if packed: gelu_pk(p, V_ACC2 + 8*c, 8, V_TMP + 20)
        else: gelu(p, V_ACC2 + 8*c, 8, V_TMP + 32)
        pack(p, V_Z1P + 4*c, V_ACC2 + 8*c, 8)
    return p

def act_voffset(p, dst, t0):
    L = V_LANE
    p.e(f'v_bfe_u32 v{t0}, v{L}, 4, 1\nv_mul_u32_u24 v{dst}, {ACT_T}, v{t0}')
    p.e(f'v_lshrrev_b32 v{t0}, 5, v{L}\nv_lshl_add_u32 v{dst}, v{t0}, 8, v{dst}')
    p.e(f'v_and_b32 v{t0}, 15, v{L}\nv_lshl_add_u32 v{dst}, v{t0}, 4, v{dst}')

def o_issue():
    p = Prog(); p.comment('o: issue kv loads')
    T = V_TMP; L = V_LANE
    KV = T; ZF = T+8
    p.e(f'v_lshlrev_b32 v{T+28}, 2, v{L}')
    p.e(f's_lshl_b32 s52, s{S_J}, 1\ns_add_u32 s52, s52, s{S_CH}\ns_lshl_b32 s53, s52, 7\ns_add_u32 s53, s53, {WS_ZA}\ns_lshl_b32 s52, s52, 11\ns_add_u32 s52, s52, {WS_KV}')
    tk = [p.vm(f'buffer_load_dword v{KV+i}, v{T+28}, {srd(SRD_WS)}, s52 offen offset:{256*i} sc1') for i in range(8)]
    p.e(f'v_bfe_u32 v{T+29}, v{L}, 4, 1\nv_xor_b32 v{T+29}, 1, v{T+29}\nv_lshlrev_b32 v{T+29}, 6, v{T+29}\nv_lshrrev_b32 v{T+27}, 5, v{L}\nv_lshl_add_u32 v{T+29}, v{T+27}, 4, v{T+29}')
    tk.append(p.vm(f'buffer_load_dwordx4 {vr(ZF,4)}, v{T+29}, {srd(SRD_WS)}, s53 offen sc1'))
    tk.append(p.vm(f'buffer_load_dwordx4 {vr(ZF+4,4)}, v{T+29}, {srd(SRD_WS)}, s53 offen offset:32 sc1'))
    return p, tk

def o_compute(tk):
    pq = Prog(); pq.comment('E_q')
    phi(pq, V_ACCQ, 16, V_TMP + 32)
    pack(pq, V_PQ, V_ACCQ, 16)
    p = Prog(); p.comment('o compute')
    T = V_TMP
    KV = T; ZF = T+8
    p.wait_vm(tk)
    KP, ZP = T+16, T+20
    pack(p, KP, KV, 8); pack(p, ZP, ZF, 8)
    Aa, Ab = T, T+4
    m = f's[{S_MASK16}:{S_MASK16+1}]'
    for k in range(4):
        p.e(f'v_cndmask_b32 v{Aa+k}, v{KP+k}, v{ZP+k}, {m}')
        p.e(f'v_cndmask_b32 v{Ab+k}, v{ZP+k}, v{KP+k}, {m}')
    Da, Db = V_ACC1, V_ACC1+16
    p.e(f'{M32} {vr(Da,16)}, {vr(Aa,4)}, {vr(V_PQ,4)}, 0')
    p.e(f'{M32} {vr(Db,16)}, {vr(Ab,4)}, {vr(V_PQ+4,4)}, 0')
    act_voffset(p, T+24, T+25)
    p.e(f's_mul_i32 s52, s{S_I}, {ACT_I}\ns_mul_i32 s53, s{S_RH}, {2*ACT_T}\ns_add_u32 s52, s52, s53\ns_lshl_b32 s53, s{S_J}, 11\ns_add_u32 s52, s52, s53\ns_lshl_b32 s53, s{S_CH}, 10\ns_add_u32 s52, s52, s53\ns_add_u32 s52, s52, {WS_ACT}')
    p2 = Prog()
    p2.e(f'v_add_f32 v{T+8}, s{S_EPS6}, v{Da+8}\nv_add_f32 v{T+9}, s{S_EPS6}, v{Db}')
    p2.e(f'v_rcp_f32 v{T+8}, v{T+8}\nv_rcp_f32 v{T+9}, v{T+9}')
    for i in range(8): p2.e(f'v_mul_f32 v{Da+i}, v{Da+i}, v{T+8}\nv_mul_f32 v{Db+8+i}, v{Db+8+i}, v{T+9}')
    Oa, Ob = T+12, T+16
    pack(p2, Oa, Da, 8); pack(p2, Ob, Db+8, 8)
    t1 = p2.vm(f'buffer_store_dwordx4 {vr(Oa,4)}, v{T+24}, {srd(SRD_WS)}, s52 offen sc1')
    t2 = p2.vm(f'buffer_store_dwordx4 {vr(Ob,4)}, v{T+24}, {srd(SRD_WS)}, s52 offen offset:512 sc1')
    return pq, p, p2, [t1, t2]

def publish(base, a_reg, a_shift, b_reg, extra=None):
    p = Prog()
    B = S_B0
    p.e(f's_lshl_b32 s{B}, s{a_reg}, {a_shift}\ns_add_u32 s{B}, s{B}, s{b_reg}\ns_lshl_b32 s{B}, s{B}, 7\ns_add_u32 s{B}, s{B}, {base}')
    p.e(f's_cmp_eq_u32 s{S_W}, 0\ns_cselect_b32 s{B}, s{B}, {OOB:#x}')
    flag_store(p, B, V_TB+2)
    return p

def sp_addr_setup(T):
    p = Prog(); L = V_LANE; t0, t1, t2 = T, T+1, T+2
    p.e(f'v_lshrrev_b32 v{t0}, 3, v{L}\nv_and_b32 v{t1}, 7, v{L}\nv_lshrrev_b32 v{t2}, 1, v{t0}')
    p.e(f'v_xor_b32 v{t1}, v{t1}, v{t2}\nv_lshlrev_b32 v{t0}, 12, v{t0}')
    for g in range(4):
        if g & 1: p.e(f'v_xor_b32 v{t2}, 4, v{t1}\nv_lshl_add_u32 v{V_SDMA+g}, v{t2}, 4, v{t0}')
        else: p.e(f'v_lshl_add_u32 v{V_SDMA+g}, v{t1}, 4, v{t0}')
        if g: p.e(f'v_add_u32 v{V_SDMA+g}, {g*8*4096 - g*1024}, v{V_SDMA+g}')
    return p

def w3_addr_setup(T):
    p = Prog(); L = V_LANE; t0, t1, t2 = T, T+1, T+2
    p.e(f'v_lshrrev_b32 v{t0}, 3, v{L}\nv_and_b32 v{t1}, 7, v{L}\nv_and_b32 v{t2}, 6, v{t0}')
    p.e(f'v_xor_b32 v{t1}, v{t1}, v{t2}')
    p.e(f'v_lshlrev_b32 v{t0}, 10, v{t0}\nv_lshl_add_u32 v{V_W3DMA}, v{t1}, 4, v{t0}')
    for u in range(1, 4): p.e(f'v_add_u32 v{V_W3DMA+u}, {u*8*1024 - u*1024}, v{V_W3DMA}')
    return p

def p2_setup(T):
    p = Prog(); L = V_LANE
    pi_rho(p, T, L, T+1)
    p.e(f'v_bfe_u32 v{T+1}, v{T}, 1, 3\nv_lshrrev_b32 v{T+2}, 5, v{L}\nv_xor_b32 v{T+1}, v{T+1}, v{T+2}')
    p.e(f'v_lshlrev_b32 v{T}, 7, v{T}')
    p.e(f's_lshl_b32 s48, s{S_RH}, 12\ns_xor_b32 s49, s48, 4096\ns_add_u32 s48, s48, {slot(NP1)}\ns_add_u32 s49, s49, {slot(NP1)}')
    for beta in range(4):
        p.e(f'v_xor_b32 v{T+2}, {2*beta}, v{T+1}\nv_lshl_add_u32 v{T+2}, v{T+2}, 4, v{T}')
        p.e(f'v_add_u32 v{V_SPRD+beta}, s48, v{T+2}\nv_add_u32 v{V_SPRD+4+beta}, s49, v{T+2}')
    return p

def p2_setup_early(T):
    p = Prog(); L = V_LANE
    V = V_Z2OFF
    p.e(f'v_lshlrev_b32 v{V}, 4, v{L}')
    pi_rho(p, T, L, T+1)
    p.e(f'v_lshlrev_b32 v{T}, 1, v{T}')
    p.e(f's_lshl_b32 s{S_B0}, s{S_I}, 7\ns_lshl_b32 s{S_B0+1}, s{S_RH}, 6\ns_add_u32 s{S_B0+2}, s{S_B0}, s{S_B0+1}\ns_xor_b32 s{S_B0+1}, s{S_B0+1}, 64\ns_add_u32 s{S_B0+1}, s{S_B0}, s{S_B0+1}')
    t1 = p.vm(f'buffer_load_ushort v{V_BSP}, v{T}, {srd(SRD_BSP)}, s{S_B0+2} offen')
    t2 = p.vm(f'buffer_load_ushort v{V_BSP+1}, v{T}, {srd(SRD_BSP)}, s{S_B0+1} offen')
    p.e(f's_lshl_b32 s{S_Z2}, s{S_J}, 19\ns_lshl_b32 s{S_B0}, s{S_W}, 17\ns_add_u32 s{S_Z2}, s{S_Z2}, s{S_B0}\ns_add_u32 s{S_Z2}, s{S_Z2}, {WS_Z2N}\ns_cmp_eq_u32 s{S_J}, 7\ns_cselect_b32 s{S_Z2B}, {OOB:#x}, s{S_Z2}')
    return p, [t1, t2]

def h_epilogue(btoks):
    p = Prog(); p.comment('h epilogue')
    T = V_TMP
    p.wait_vm(btoks)
    toks = []
    n = 0
    for X in range(2):
        for c in range(2):
            O = T+4 + 4*(n & 1); n += 1
            for d in range(4):
                zp = V_Z1P + 8*X + 4*c + d; t = T+12 + 2*d
                p.e(f'v_lshlrev_b32 v{t}, 16, v{zp}\nv_and_b32 v{t+1}, 0xffff0000, v{zp}')
            for d in range(4):
                g = V_ACC0 + 16*X + 8*c + 2*d
                p.e(f'v_pk_add_f32 {vr(g,2)}, {vr(g,2)}, {vr(V_BSP,2)} op_sel:[0,{X}] op_sel_hi:[1,{X}]')
            for d in range(4):
                g = V_ACC0 + 16*X + 8*c + 2*d; t = T+12 + 2*d
                p.e(f'v_pk_mul_f32 {vr(g,2)}, {vr(g,2)}, {vr(t,2)}')
            for d in range(4):
                g = V_ACC0 + 16*X + 8*c + 2*d
                p.e(f'v_cvt_pk_bf16_f32 v{O+d}, v{g}, v{g+1}')
            so = (54 + X) if c == 0 else (48 + X)
            toks.append(p.vm(f'buffer_store_dwordx4 {vr(O,4)}, v{T}, {srd(SRD_WS)}, s{so} offen sc1'))
    return p, toks

def h_setup():
    p = Prog(); T = V_TMP
    p.e(f'v_lshlrev_b32 v{V_BSP}, 16, v{V_BSP}\nv_lshlrev_b32 v{V_BSP+1}, 16, v{V_BSP+1}')
    act_voffset(p, T, T+1)
    p.e(f's_mul_i32 s52, s{S_I}, {ACT_I}\ns_lshl_b32 s53, s{S_J}, 12\ns_add_u32 s52, s52, s53\ns_lshl_b32 s53, s{S_W}, 10\ns_add_u32 s52, s52, s53\ns_add_u32 s52, s52, {WS_ACT + 32*512}')
    p.e(f's_cmp_eq_u32 s{S_J}, 7\ns_cselect_b32 s52, {OOB:#x}, s52')
    p.e(f's_mul_i32 s53, s{S_RH}, {2*ACT_T}\ns_add_u32 s54, s52, s53\ns_sub_u32 s55, s52, s53\ns_add_u32 s55, s55, {2*ACT_T}')
    p.e(f's_add_u32 s48, s54, 512\ns_add_u32 s49, s55, 512')
    return p

SENT = 0xffffffff
SENTSC = [1]
XB_FREE = 96
def sentinel_stores(D):
    p = Prog(); T = 100
    act_voffset(p, T, T+1)
    B = S_B0
    p.e(f's_mul_i32 s{B}, s{S_I}, {ACT_I}\ns_lshl_b32 s{B+1}, s{S_J}, 12\ns_add_u32 s{B}, s{B}, s{B+1}\ns_lshl_b32 s{B+1}, s{S_W}, 10\ns_add_u32 s{B}, s{B}, s{B+1}\ns_add_u32 s{B}, s{B}, {WS_ACT + 32*512}')
    p.e(f's_cmp_eq_u32 s{S_J}, 7\ns_cselect_b32 s{B}, {OOB:#x}, s{B}\ns_add_u32 s{B+1}, s{B}, {2*ACT_T}')
    for k in range(4): p.e(f'v_mov_b32 v{D+k}, -1')
    toks = []
    for so in (B, B+1):
        for c in range(2):
            toks.append(p.vm(f'buffer_store_dwordx4 {vr(D,4)}, v{T}, {srd(SRD_WS)}, s{so} offen offset:{512*c}' + (' sc1' if SENTSC[0] else '')))
    return p, toks

def h_poll(T):
    p = Prog(); L = V_LANE; B = S_B0
    l0, l1 = label('hp'), label('hpok')
    p.e(f'v_lshrrev_b32 v{T}, 2, v{L}\nv_min_u32 v{T}, 6, v{T}\nv_lshlrev_b32 v{T}, 12, v{T}\nv_and_b32 v{T+1}, 3, v{L}\nv_lshl_add_u32 v{T}, v{T+1}, 10, v{T}')
    p.e(f's_mul_i32 s{B}, s{S_I}, {ACT_I}\ns_mul_i32 s{B+1}, s{S_W}, {ACT_T}\ns_add_u32 s{B}, s{B}, s{B+1}\ns_add_u32 s{B}, s{B}, {WS_ACT + 33*512}')
    p.begin_bundle()
    p.e(f's_mov_b32 s{B+1}, 0')
    p.e(f'{l0}:')
    p.vm_nomodel(f'buffer_load_dword v{T+1}, v{T}, {srd(SRD_WS)}, s{B} offen sc1')
    p.e_nomodel('s_waitcnt vmcnt(0)')
    p.e(f'v_cmp_eq_u32 vcc, -1, v{T+1}')
    p.e(f's_add_u32 s{B+1}, s{B+1}, 1')
    p.e(f's_cbranch_vccz {l1}')
    p.e(f's_cmp_lt_u32 s{B+1}, 0x40000\ns_cbranch_scc1 {l0}')
    p.e(f'{l1}:')
    p.end_bundle()
    return p

def h_verify(kp, areg_, voff, soff_base, off, T):
    p = Prog(); B = S_B0
    l0, l1 = label('hv'), label('hvok')
    p.begin_bundle()
    p.e(f'v_accvgpr_read_b32 v{T}, a{areg_+3}')
    p.e(f'v_cmp_eq_u32 vcc, -1, v{T}')
    p.e(f's_cbranch_vccz {l1}')
    p.e(f's_mov_b32 s{B+1}, 0')
    p.e(f'{l0}:')
    p.e(f's_add_u32 s{B+2}, s{soff_base}, {off}')
    p.vm_nomodel(f'buffer_load_dwordx4 {ar(areg_,4)}, v{voff}, {srd(SRD_WS)}, s{B+2} offen sc1')
    p.e_nomodel('s_waitcnt vmcnt(0)')
    p.e(f'v_accvgpr_read_b32 v{T}, a{areg_+3}')
    p.e(f'v_cmp_eq_u32 vcc, -1, v{T}')
    p.e(f's_add_u32 s{B+1}, s{B+1}, 1')
    p.e(f's_cbranch_vccz {l1}')
    p.e(f's_cmp_lt_u32 s{B+1}, 0x40000\ns_cbranch_scc1 {l0}')
    p.e(f'{l1}:')
    p.end_bundle()
    return p

def p3_setup(T):
    p = Prog(); L = V_LANE
    p.e(f'v_and_b32 v{T}, 15, v{L}\ns_and_b32 s{S_B0}, s{S_W}, 1\ns_lshl_b32 s{S_B0}, s{S_B0}, 4\nv_add_u32 v{T}, s{S_B0}, v{T}')
    pi_rho(p, T+1, T, T+2)
    p.e(f'v_lshlrev_b32 v{T+1}, 10, v{T+1}\nv_lshrrev_b32 v{T+2}, 4, v{L}\nv_lshl_add_u32 v{V_OUTOFF}, v{T+2}, 3, v{T+1}')
    p.e(f's_lshl_b32 s{S_OUT}, s{S_I}, 16\ns_lshr_b32 s{S_B0}, s{S_W}, 1\ns_lshl_b32 s{S_B0}, s{S_B0}, 15\ns_add_u32 s{S_OUT}, s{S_OUT}, s{S_B0}\ns_lshl_b32 s{S_B0}, s{S_J}, 7\ns_add_u32 s{S_OUT}, s{S_OUT}, s{S_B0}')
    p.e(f's_mul_i32 s{S_A3}, s{S_I}, {ACT_I}\ns_mul_i32 s{S_B0}, s{S_W}, {ACT_T}\ns_add_u32 s{S_A3}, s{S_A3}, s{S_B0}\ns_add_u32 s{S_A3}, s{S_A3}, {WS_ACT}\ns_mov_b32 s{S_H3}, s{S_A3}')
    return p

def w3_rd_setup(T, s0):
    p = Prog(); L = V_LANE
    p.e(f'v_lshrrev_b32 v{T}, 5, v{L}\nv_bfe_u32 v{T+1}, v{L}, 4, 1\nv_bfe_u32 v{T+2}, v{L}, 2, 2')
    p.e(f'v_lshlrev_b32 v{T+3}, 4, v{T}\nv_lshl_add_u32 v{T+3}, v{T+1}, 2, v{T+3}\nv_add_u32 v{T+3}, v{T+3}, v{T+2}\nv_lshlrev_b32 v{T+3}, 7, v{T+3}')
    p.e(f'v_and_b32 v{T+4}, 3, v{L}\nv_lshl_add_u32 v{T+3}, v{T+4}, 3, v{T+3}\nv_add_u32 v{T+3}, {slot(s0)}, v{T+3}')
    p.e(f'v_lshrrev_b32 v{T+2}, 1, v{T+2}\nv_lshl_add_u32 v{T+2}, v{T+1}, 1, v{T+2}')
    for q in range(4): p.e(f'v_xor_b32 v{T+4}, {q}, v{T+2}\nv_lshl_add_u32 v{V_W3RD+q}, v{T+4}, 5, v{T+3}')
    return p

def final_epilogue(p, xt):
    T = V_TMP
    C, ONE = T+32, T+34
    p.e(f'v_mov_b32 v{C}, s{S_L2E}\nv_mov_b32 v{C+1}, s{S_L2E}\nv_mov_b32 v{ONE}, 1.0\nv_mov_b32 v{ONE+1}, 1.0')
    for k in range(8): p.e(f'v_pk_mul_f32 {vr(T+2*k,2)}, {vr(V_B3+2*k,2)}, {vr(C,2)}')
    for k in range(16): p.e(f'v_exp_f32 v{T+k}, -v{T+k}')
    for k in range(8): p.e(f'v_pk_mul_f32 {vr(V_B3+2*k,2)}, {vr(V_B3+2*k,2)}, {vr(V_S3+2*k,2)}')
    for k in range(8): p.e(f'v_pk_add_f32 {vr(T+2*k,2)}, {vr(T+2*k,2)}, {vr(ONE,2)}')
    for k in range(16): p.e(f'v_rcp_f32 v{T+k}, v{T+k}')
    p.wait_vm(xt)
    for k in range(8): p.e(f'v_lshlrev_b32 v{T+16+2*k}, 16, v{V_XR+k}\nv_and_b32 v{T+17+2*k}, 0xffff0000, v{V_XR+k}')
    for q in range(4):
        for d in range(2):
            k = 2*q + d
            p.e(f'v_pk_fma_f32 {vr(T+2*k,2)}, {vr(T+2*k,2)}, {vr(V_B3+2*k,2)}, {vr(T+16+2*k,2)}')
        p.e(f'v_cvt_pk_bf16_f32 v{V_S3+2*q}, v{T+4*q}, v{T+4*q+1}\nv_cvt_pk_bf16_f32 v{V_S3+2*q+1}, v{T+4*q+2}, v{T+4*q+3}')
        p.vm(f'buffer_store_dwordx2 {vr(V_S3+2*q,2)}, v{V_OUTOFF}, {srd(SRD_OUT)}, s{S_OUT} offen offset:{32*q}')

def build(cfg):
    p = Prog()
    p.e('s_cmp_ge_u32 s2, 256\ns_cbranch_scc1 L_end')
    if cfg.stamps: p.e('v_mov_b32 v255, 0')
    stamp(p, cfg, 'rt0', True); stamp(p, cfg, 'start')
    xt, XB, vwb = prologue(p, cfg)
    dtoks = {}
    TP = V_TMP + 4
    if cfg.mall == 1: mall_prefetch(p, cfg)
    za = Prog(); z_addr_setup(za, 246); p.extend(za)
    if cfg.ctouch: p.extend(code_touch(234, cfg.codebytes))
    ez = Prog(); et, zt = epoch_zero(ez, 246); p.extend(ez)
    stamp(p, cfg, 'xissued')
    if cfg.stamps and cfg.xst:
        p.wait_vm(xt[0]); stamp(p, cfg, 'x0'); p.wait_vm(xt[-1]); stamp(p, cfg, 'x15')
    st = Prog(); AB = p0_stats(st, xt, XB, TP)
    nm = Prog(); p0_norm(nm, XB, TP, AB, vwb)
    ka = Prog(); k_addr_setup(ka, 240)
    ef = Prog(); epoch_finish(ef, et, zt, 246)
    SENTSC[0] = cfg.sentsc
    sst, sstt = sentinel_stores(XB_FREE)
    pre_ = Prog(); dm = Prog(); post_ = Prog()
    order = [('d', 0), ('d', 1), ('tw', 0), ('d', 2), ('s', 0)]
    for idx, (kind, s_) in enumerate(order):
        dst = pre_ if idx < cfg.p0pre else (dm if idx < cfg.p0pre + cfg.p0mid else post_)
        if kind == 'd': dst.extend(dma_stage(s_, dtoks))
        elif kind == 'tw':
            if cfg.touch: dst.extend(touch_weights(238))
        elif cfg.sent: dst.extend(sst)
    if cfg.touch and not cfg.touch2:
        tp, tl = touches(238); post_.extend(tp)
        for t_ in tl:
            if t_.startswith('buffer'): post_.vm(t_)
            else: post_.e(t_)
        post_.extend(touch_w3(238))
    p.extend(pre_)
    p.extend(ka)
    sA = Prog(); sB = Prog()
    if cfg.xst: stamp(sA, cfg, 'stats'); stamp(sB, cfg, 'normb')
    body = st.L + sA.L + nm.L + sB.L
    du = units(dm.L); nb = len(body); out = []; di = 0
    vmu = [k for k, u in enumerate(du) if any(i.kind == 'vmem' for i in u)]
    nv = len(vmu); vdone = 0
    for k, ins in enumerate(body):
        out.append(ins)
        tgt = ((k + 1) * nv) // nb
        while vdone < tgt and di < len(du):
            u = du[di]; out.extend(u); di += 1
            if any(i.kind == 'vmem' for i in u): vdone += 1
    for u in du[di:]: out.extend(u)
    p.extend(out)
    p.extend(post_)
    if cfg.mall == 2: mall_prefetch(p, cfg, 1)
    if cfg.xst: stamp(p, cfg, 'ka')
    p.extend(ef)
    if cfg.xst: stamp(p, cfg, 'ef')
    p.drain_lgkm()
    stamp(p, cfg, 'normed')
    p.wait_vm(dtoks[0])
    p.e('s_barrier')
    stamp(p, cfg, 'bar0')

    steps = []; bar = {}
    def new_step(): s = Prog(); steps.append(s); return s
    P1 = []
    for s in range(NP1):
        typ, blk, k = STAGES[s]; nb_ = 16 if typ == 'Q' else 8
        for bl in range(nb_): P1.append((s, bl, k*nb_ + bl, typ, blk, nb_))
    ACC = {'z2': V_ACC0, 'kv': V_ACC1, 'z1': V_ACC2, 'q': V_ACCQ}
    rt = {}; xk = {}
    def p1_reads(q, n):
        s, bl, bg, typ, blk, nb_ = P1[n]
        if bl == 0: q.e(f'v_add_u32 v{V_RD + (s&1)}, {slot(s)}, v{V_ZRD if typ == "Z" else V_KRD}')
        rb = V_RD + (s & 1); wf = V_WF + 8*(n % 4)
        if typ == 'Z': rt[n] = [q.ds(f'ds_read_b64_tr_b16 {vr(wf+2*t,2)}, v{rb} offset:{2048*bl + 512*t}') for t in range(2)]
        elif typ == 'KV': rt[n] = [q.ds(f'ds_read_b64_tr_b16 {vr(wf+4*pt+2*t,2)}, v{rb} offset:{2048*bl + 512*t + 16384*pt}') for pt in range(2) for t in range(2)]
        else: rt[n] = [q.ds(f'ds_read_b64_tr_b16 {vr(wf+2*t,2)}, v{rb} offset:{2048*bl + 512*t}') for t in range(2)]
    def x_reads(q, b):
        if b % 8 == 0 and b > 0:
            d = 256 * ((b >> 3) ^ ((b >> 3) - 1))
            for k in range(16): q.e(f'v_xor_b32 v{V_XRD+k}, {d}, v{V_XRD+k}')
        xk[b] = [q.ds(f'ds_read_b128 {ar(4*b,4)}, v{V_XRD + (b & 7)}'), q.ds(f'ds_read_b128 {ar(128+4*b,4)}, v{V_XRD + 8 + (b & 7)}')]
    pre = Prog()
    x_reads(pre, 0); p1_reads(pre, 0); x_reads(pre, 1); p1_reads(pre, 1); x_reads(pre, 2); x_reads(pre, 3)
    p.extend(pre)
    xnext = 4
    for n, (s, bl, bg, typ, blk, nb_) in enumerate(P1):
        q = new_step()
        if bl == nb_ - 2: bar[s+1] = n
        w = list(rt[n])
        if blk == 'z2': w += xk[bg]
        q.wait_lgkm(w)
        wf = V_WF + 8*(n % 4); acc = ACC[blk]
        c0 = lambda a: ('0' if bg == 0 else vr(a, 16))
        if blk == 'z2':
            m1 = f'{M32} {vr(acc,16)}, {ar(4*bg,4)}, {vr(wf,4)}, {c0(acc)}'
            m2 = f'{M32} {vr(acc+16,16)}, {ar(128+4*bg,4)}, {vr(wf,4)}, {c0(acc+16)}'
        elif blk == 'z1':
            m1 = f'{M32} {vr(acc,16)}, {vr(wf,4)}, {ar(4*bg,4)}, {c0(acc)}'
            m2 = f'{M32} {vr(acc+16,16)}, {vr(wf,4)}, {ar(128+4*bg,4)}, {c0(acc+16)}'
        elif blk == 'kv':
            m1 = f'{M32} {vr(acc,16)}, {ar(4*bg,4)}, {vr(wf,4)}, {c0(acc)}'
            m2 = f'{M32} {vr(acc+16,16)}, {ar(4*bg,4)}, {vr(wf+4,4)}, {c0(acc+16)}'
        else:
            m1 = f'{M32} {vr(acc,16)}, {vr(wf,4)}, {ar(4*bg,4)}, {c0(acc)}'; m2 = None
        q.e(m1)
        if n + 2 < len(P1): p1_reads(q, n+2)
        if m2: q.e(m2)
        if xnext < 32:
            tgt = min(32, 4 + (28 * (n + 1) + 12) // 13)
            while xnext < tgt: x_reads(q, xnext); xnext += 1
    P2_0 = len(steps)
    ZD = cfg.zdepth
    ZA = 128
    zt_ = {}; sr = {}
    def zload(q, b):
        if b >= 128: return
        if cfg.noz:
            zt_[b] = []; return
        q.begin_bundle()
        if b % 16 == 0: q.e(f's_xor_b32 s{S_Z2}, s{S_R2}, {b // 16}\ns_lshl_b32 s{S_Z2}, s{S_Z2}, 14\ns_add_u32 s{S_Z2}, s{S_Z2}, s{S_Z2B}')
        elif b % 4 == 0: q.e(f's_add_u32 s{S_Z2}, s{S_Z2}, 4096')
        zt_[b] = q.vm(f'buffer_load_dwordx4 {ar(ZA + 4*(b % 32),4)}, v{V_Z2OFF}, {srd(SRD_WS)}, s{S_Z2} offen offset:{1024*(b%4)}' + (' sc1' if cfg.zsc1 else ''))
        q.end_bundle()
    def sp_reads(q, b):
        if b >= 128: return
        st_, bl = b // 16, b % 16; s = NP1 + st_
        f = V_SPF + 8*(b % 3); seg, beta = bl // 4, bl % 4
        if bl == 0 and st_ > 0:
            d = slot(s) - slot(s-1)
            for k in range(8): q.e(f'v_add_u32 v{V_SPRD+k}, {d}, v{V_SPRD+k}' if d >= 0 else f'v_subrev_u32 v{V_SPRD+k}, {-d}, v{V_SPRD+k}')
        sr[b] = [q.ds(f'ds_read_b128 {vr(f+4*X,4)}, v{V_SPRD+4*X+beta} offset:{8192*seg}') for X in range(2)]
    p2front = Prog()
    p2steps = []
    for b in range(128):
        q = new_step(); p2steps.append(q)
        st_, bl = b // 16, b % 16
        if bl == 14: bar[NP1 + st_ + 1] = P2_0 + b
    P3_0 = len(steps)
    S3_0 = NP1 + 8
    at = {}; wr = {}
    def areg(kp): return 4*kp
    def aload(q, kp):
        q.begin_bundle()
        if kp % 4 == 0 and kp > 0: q.e(f's_add_u32 s{S_A3}, s{S_A3}, 4096')
        at[kp] = q.vm(f'buffer_load_dwordx4 {ar(areg(kp),4)}, v{V_Z2OFF+0 if False else 254 if False else V_AOFF}, {srd(SRD_WS)}, s{S_A3} offen offset:{1024*(kp%4)} sc1')
        q.end_bundle()
    def wreads(q, kp):
        if kp >= 44: return
        s = S3_0 + kp // 8; kl = kp % 8
        if kl == 0 and kp > 0 and kp != 16:
            d = slot(s) - slot(s-1)
            for qq in range(4): q.e(f'v_add_u32 v{V_W3RD+qq}, {d}, v{V_W3RD+qq}' if d >= 0 else f'v_subrev_u32 v{V_W3RD+qq}, {-d}, v{V_W3RD+qq}')
        f = V_W3F + 16*(kp % 3)
        wr[kp] = [q.ds(f'ds_read_b64_tr_b16 {vr(f+4*qq+2*t,2)}, v{V_W3RD+qq} offset:{4096*kl + 1024*t}') for qq in range(4) for t in range(2)]
    p3steps = []
    for kp in range(44):
        q = new_step(); p3steps.append(q)
        if kp % 8 == 6 and kp < 16: bar[S3_0 + kp // 8 + 1] = P3_0 + kp

    W = Weaver(steps)
    init = Prog()
    for b in range(ZD): zload(init, b)
    sp0 = Prog(); sp_reads(sp0, 0); sp_reads(sp0, 1)
    for b in range(128):
        q = p2steps[b]
        q.wait_vm(zt_[b]); q.wait_lgkm(sr[b])
        f = V_SPF + 8*(b % 3)
        for X in range(2):
            acc = V_ACC0 + 16*X
            q.e(f'{M32} {vr(acc,16)}, {ar(ZA + 4*(b % 32),4)}, {vr(f+4*X,4)}, {"0" if b == 0 else vr(acc,16)}')
            if X == 0: sp_reads(q, b+2)
            else: zload(q, b + ZD)
    oload = Prog()
    for kp in range(16): aload(oload, kp)
    hl = {}
    for kp in range(16, 44):
        hl[kp] = Prog(); aload(hl[kp], kp)
    w0 = Prog(); wreads(w0, 0); wreads(w0, 1)
    w16 = Prog(); wreads(w16, 16); wreads(w16, 17)
    for kp in range(44):
        q = p3steps[kp]
        rq = Prog()
        if not (kp in (14, 15)): wreads(rq, kp+2)
        q.wait_vm(at[kp])
        q.wait_lgkm(wr[kp])
        f = V_W3F + 16*(kp % 3); acc = V_S3 if kp < 16 else V_B3; first = kp in (0, 16)
        R = rq.L; pre_ = [i for i in R if i.kind != 'ds']; ds_ = [i for i in R if i.kind == 'ds']
        for qq in range(4):
            q.e(f'{M16} {vr(acc+4*qq,4)}, {vr(f+4*qq,4)}, {ar(areg(kp),4)}, {"0" if first else vr(acc+4*qq,4)}')
            if qq == 0: q.L.extend(pre_)
            q.L.extend(ds_[2*qq:2*qq+2])
        if kp >= 16:
            if cfg.sent: q.e(f'v_accvgpr_read_b32 v{V_TB+2}, a{areg(kp)+3}\nv_max_u32 v{V_TB+3}, v{V_TB+3}, v{V_TB+2}')
            for k2 in (16 + cfg.hinit + 2*(kp-16), 16 + cfg.hinit + 2*(kp-16) + 1):
                if k2 < 44: q.extend(hl[k2])

    prebar = {s: Prog() for s in bar}
    postbar = {s: Prog() for s in bar}
    dmap = {s: dma_stage(s, dtoks) for s in range(3, len(STAGES))}
    if cfg.nosp:
        for s in range(14, 22):
            dmap[s] = Prog(); dmap[s].e('s_nop 0'); dtoks[s] = []
    if cfg.nodma:
        for s in range(3, 14):
            dmap[s] = Prog(); dmap[s].e('s_nop 0'); dtoks[s] = []
    z2a, z2aw = e_z2a(); z2b = e_z2b()
    s1i, s1t = s1_issue(); s1f, s1w = s1_finish(s1t)
    z2c, z2ct = e_z2c()
    zfi, zft = zf_issue()
    kv1, kv2, kvw, kv3 = e_kv()
    kva, kvt = kv_atomics(zft)
    z1e = e_z1(0)
    oi, oit = o_issue(); pqp, oc1, oc2, ot = o_compute(oit)
    p2e, btoks = p2_setup_early(V_TB+4)
    hs = h_setup(); he, ht = h_epilogue(btoks)
    if cfg.sent: prebar[cfg.z2b_bar].wait_vm(sstt)
    prebar[2].wait_lgkm([t for b in range(32) for t in xk[b]])
    if not cfg.noside:
        prebar[cfg.z2b_bar].wait_lgkm(z2aw)
        prebar[cfg.ab_bar].wait_lgkm(s1w)
        prebar[cfg.s2bar].wait_vm(z2ct)
    postbar[cfg.s2bar].extend(publish(WS_F2, S_J, 5, S_I))
    if not cfg.noside2:
        prebar[cfg.fkbar].wait_vm(kvt)
        prebar[cfg.s3bar].wait_vm(ot)
    postbar[cfg.fkbar].extend(publish(WS_FK, S_J, 5, S_I))
    postbar[cfg.s3bar].extend(publish(WS_F3, S_I, 3, S_J))
    for s, n in bar.items():
        b_ = Prog(); b_.comment(f'--- barrier for stage {s}')
        if cfg.bst == 2 and 5 <= s <= 13: stamp(b_, cfg, f'pre{s}')
        if s < len(STAGES): b_.wait_vm(dtoks[s])
        if cfg.bst == 2 and 5 <= s <= 13: stamp(b_, cfg, f'vm{s}')
        b_.extend(prebar[s])
        if not (cfg.nobar and s <= 14): b_.e('s_barrier')
        if cfg.bst == 1 or (cfg.bst == 2 and 4 <= s <= 14) or s in (4, 8, 12, 14, 18, 22): stamp(b_, cfg, f'B{s}')
        b_.extend(postbar[s])
        W.at(b_, n, front=True)
    W.fill(dmap[3].L + dmap[4].L, bar[2] + 1, bar[3], by_units=True)
    LAST = len(STAGES) - 1
    for s in range(5, LAST):
        pr = dmap[s]
        if s == NP1: pr = Prog(); pr.extend(sp_addr_setup(252)); pr.extend(dmap[s])
        if s == NP1 + 8: pr = Prog(); pr.extend(w3_addr_setup(252)); pr.extend(dmap[s])
        if s == LAST - 1: a, b = bar[s-2], bar[s-2] + 1
        else: a, b = bar[s-2] + 1, bar[s-1]
        b2 = a + max(1, ((b - a) * cfg.dfrac) // 100)
        W.fill(pr, a, b2, by_units=True)
    if not cfg.noside:
        W.fill(z2a, 33, cfg.z2a_end)
        zb = bar[cfg.z2b_bar]
        W.fill(z2b, zb + 1, zb + 5)
        ab = bar[cfg.ab_bar]
        W.fill(s1i, ab - 9, ab - 8)
        W.fill(s1f, ab - 4, ab)
        W.fill(z2c, ab + 1, ab + 8)
    if cfg.touch2:
        tp, tl = touches(238)
        tq = Prog(); tq.extend(tp)
        for t_ in tl:
            if t_.startswith('buffer'): tq.vm(t_)
            else: tq.e(t_)
        tq.extend(touch_w3(238))
        W.fill(tq, cfg.touch2, cfg.touch2 + 8)
    W.fill(p2e, 104, 110)
    W.fill(zfi, 112, 113)
    fr = Prog()
    stamp(fr, cfg, 'p1end')
    T = V_TB
    fr.e(f'v_and_b32 v{T+2}, 31, v{V_LANE}\nv_lshlrev_b32 v{T+2}, 7, v{T+2}\ns_lshl_b32 s{S_B0}, s{S_J}, 12\ns_add_u32 s{S_B0}, s{S_B0}, {WS_F2}')
    f2t = flag_load(fr, T+3, T+2, S_B0)
    fr.extend(p2_setup(V_TMP))
    fr.extend(sp0)
    flag_check(fr, f2t, T+3, T+2, S_B0, 's2', S_B0+1)
    stamp(fr, cfg, 's2ok')
    if not cfg.noside2:
        iu = units(init.L); body = kv1.L + kv2.L; nb_ = len(body); di = 0
        for k, ins in enumerate(body):
            fr.L.append(ins)
            tgt = ((k + 1) * len(iu)) // nb_ + 2
            while di < min(tgt, len(iu)) and ins.grp is None and ins.kind != 'mfma':
                fr.extend(iu[di]); di += 1
        for u in iu[di:]: fr.extend(u)
        fr.wait_lgkm(kvw); fr.e('s_barrier'); fr.extend(kv3); fr.extend(kva)
    else:
        fr.extend(init)
    if cfg.mall == 2: mall_prefetch(fr, cfg, 2)
    stamp(fr, cfg, 'kvdone')
    W.at(fr, P2_0, front=True)
    if not cfg.noside2:
        W.fill(pqp, P2_0 + 1, P2_0 + 22)
        W.fill(z1e, P2_0 + 22, P2_0 + cfg.z1end)
        ck = Prog()
        ck.e(f'v_and_b32 v{T}, 31, v{V_LANE}\nv_lshlrev_b32 v{T}, 7, v{T}\ns_lshl_b32 s{S_B0+2}, s{S_J}, 12\ns_add_u32 s{S_B0+2}, s{S_B0+2}, {WS_FK}')
        fkt = flag_load(ck, T+1, T, S_B0+2)
        W.fill(ck, P2_0 + cfg.kchk, P2_0 + cfg.kchk + 1)
        ck2 = Prog(); flag_check(ck2, fkt, T+1, T, S_B0+2, 'fk', S_B0+3)
        W.fill(ck2, P2_0 + cfg.kchk + 8, P2_0 + cfg.kchk + 9)
        W.fill(oi, P2_0 + cfg.kchk + 9, P2_0 + cfg.kchk + 11)
        W.fill(oc1, P2_0 + cfg.kchk + 19, P2_0 + cfg.kchk + 22)
        W.fill(oc2, P2_0 + cfg.kchk + 23, P2_0 + cfg.kchk + 27)
    p3s = p3_setup(V_TMP+10)
    W.fill(p3s, P2_0 + 30, P2_0 + 34)
    late = Prog()
    late.e(f'v_lshlrev_b32 v{V_AOFF}, 4, v{V_LANE}')
    xres = [late.vm(f'buffer_load_dwordx2 {vr(V_XR+2*q,2)}, v{V_OUTOFF}, {srd(SRD_X)}, s{S_OUT} offen offset:{32*q}') for q in range(4)]
    late.e(f'v_and_b32 v{T}, 7, v{V_LANE}\nv_lshlrev_b32 v{T}, 7, v{T}\ns_lshl_b32 s{S_B0}, s{S_I}, 10\ns_add_u32 s{S_B0}, s{S_B0}, {WS_F3}')
    f3t = flag_load(late, T+1, T, S_B0)
    W.fill(late, P2_0 + 108, P2_0 + 111)
    chk3 = Prog(); flag_check(chk3, f3t, T+1, T, S_B0, 's3', S_B0+1)
    W.fill(chk3, P2_0 + 117, P2_0 + 118)
    W.fill(oload, P2_0 + 118, P2_0 + 128, by_units=True)
    W.fill(hs, P2_0 + 112, P2_0 + 116)
    f3 = Prog()
    stamp(f3, cfg, 'p2end')
    f3.extend(he)
    f3.extend(w3_rd_setup(V_TMP + 20, S3_0))
    f3.extend(w0)
    f3.e(f'v_and_b32 v{V_EP}, 31, v{V_LANE}\nv_lshlrev_b32 v{V_EP}, 10, v{V_EP}\ns_mov_b32 s{S_EP}, {WS_F3 + 7*128}')
    ept = flag_load(f3, V_EP+1, V_EP, S_EP)
    stamp(f3, cfg, 'h_issued')
    W.at(f3, P3_0, front=True)
    T = V_TB
    if not cfg.sent:
        pb = Prog(); pb.wait_vm(ht); pb.e('s_barrier'); stamp(pb, cfg, 's4pub'); pb.extend(publish(WS_F4, S_I, 3, S_J))
        W.at(pb, P3_0 + cfg.s4step, front=True)
    c4 = Prog()
    c4.e('s_barrier')
    c4.extend(dmap[LAST])
    stamp(c4, cfg, 's4pre')
    if not cfg.sent:
        c4.e(f'v_and_b32 v{T}, 7, v{V_LANE}\nv_lshlrev_b32 v{T}, 7, v{T}\ns_lshl_b32 s{S_B0}, s{S_I}, 10\ns_add_u32 s{S_B0}, s{S_B0}, {WS_F4}')
        f4t = flag_load(c4, T+1, T, S_B0)
        flag_check(c4, f4t, T+1, T, S_B0, 's4', S_B0+1)
    else:
        c4.extend(h_poll(T))
    c4.wait_vm(dtoks[LAST-2] + dtoks[LAST-1] + dtoks[LAST])
    c4.e('s_barrier')
    stamp(c4, cfg, 's4ok')
    c4.e(f's_mov_b32 s{S_B0+4}, 0')
    c4.e('L_hredo:')
    c4.e(f's_add_u32 s{S_A3}, s{S_H3}, {12*1024}')
    c4.e(f'v_mov_b32 v{V_TB+3}, 0')
    for k2 in range(16, 16 + cfg.hinit): c4.extend(hl[k2])
    c4.extend(w3_rd_setup(V_TMP + 20, S3_0 + 2))
    c4.extend(w16)
    W.at(c4, P3_0 + 16, front=True)
    W.emit(p)
    if cfg.sent:
        p.e(f'v_cmp_eq_u32 vcc, -1, v{V_TB+3}')
        p.e(f's_add_u32 s{S_B0+4}, s{S_B0+4}, 1')
        p.e(f's_cbranch_vccz L_hdone')
        p.e(f's_cmp_lt_u32 s{S_B0+4}, 0x1000\ns_cbranch_scc1 L_hredo')
        p.e('L_hdone:')
    stamp(p, cfg, 'p3main')
    final_epilogue(p, xres)
    p.e(f's_or_b32 s{S_B0}, s2, s{S_W}\ns_cmp_lg_u32 s{S_B0}, 0\ns_cbranch_scc1 L_noep')
    flag_check(p, ept, V_EP+1, V_EP, S_EP, 'ep', S_B0+1)
    p.e(f's_mov_b32 s{S_B0}, 0')
    flag_store(p, S_B0, V_EP)
    p.e('L_noep:')
    p.drain_vm()
    stamp(p, cfg, 'end'); stamp(p, cfg, 'rt1', True)
    stamp_flush(p, cfg)
    return p

V_AOFF = 62

def emit(cfg, path):
    p = build(cfg)
    body = finalize(p, verbose=True)
    hdr = open('cdna_kernels/%s.s.ref' % NAME).read().split('; Override launch')[0]
    txt = hdr + f"""; @launch grid=(256,1,1) block=(256,1,1) lds={LDS_TOTAL}
.amdgcn_target "amdgcn-amd-amdhsa--gfx950"
.text
.globl {NAME}_kernel
.p2align 8
.type {NAME}_kernel,@function
{NAME}_kernel:
{body}
L_end:
    s_endpgm
.section .rodata,"a"
.p2align 6
.amdhsa_kernel {NAME}_kernel
  .amdhsa_next_free_vgpr 512
  .amdhsa_next_free_sgpr 102
  .amdhsa_accum_offset 256
  .amdhsa_group_segment_fixed_size 0
  .amdhsa_kernarg_size 88
  .amdhsa_user_sgpr_count 2
  .amdhsa_user_sgpr_kernarg_segment_ptr 1
  .amdhsa_system_sgpr_workgroup_id_x 1
.end_amdhsa_kernel
"""
    open(path, 'w').write(txt)

if __name__ == '__main__':
    cfg = Cfg()
    for a in sys.argv[2:]:
        if a == 'stamps': cfg.stamps = True
        elif '=' in a:
            k, v = a.split('='); setattr(cfg, k, int(v))
    emit(cfg, sys.argv[1])
    if cfg.stamps: open(sys.argv[1] + '.stamps', 'w').write('\n'.join(STAMPS))
```
